```python
import torch

def _softmax(x, axis=-1):
    return torch.softmax(x, dim=axis)

def _gelu(x):
    return torch.nn.functional.gelu(x, approximate='tanh')

def _silu(x):
    return torch.nn.functional.silu(x)

def _sigmoid(x):
    return torch.sigmoid(x)

def _layernorm(x, axis=-1, eps=1e-05):
    m = x.mean(dim=axis, keepdim=True)
    v = x.var(dim=axis, keepdim=True, unbiased=False)
    return (x - m) / torch.sqrt(v + eps)

def _scatter_add(tgt, idx, src, axis=0):
    return tgt.clone().index_add_(axis, idx, src)

def _segment_sum(src, seg, n):
    out = torch.zeros((n,) + src.shape[1:], dtype=src.dtype)
    return out.index_add_(0, seg, src)

def _pad(x, pw):
    flat = tuple((v for pair in reversed(pw) for v in pair))
    return torch.nn.functional.pad(x, flat)
kernel_name = 'recurrent_scan__memory_aug_recurrent_mem_tr__glu_gated_geglu__prompt'

def setup_inputs():

    _w = lambda a: (lambda t: t.to(torch.bfloat16) if t.is_floating_point() else t)(torch.as_tensor(a))

    def _A_setup():
        B, S, Dm = (1, 2048, 512)
        H, Dh = (32, 128)
        M, seg = (8, 32)
        seg = min(seg, S)
        S = S // seg * seg
        return {'x': _w((lambda *s: torch.randn(*s, dtype=torch.bfloat16) * 0.1)(B, S, Dm)), 'mem0': _w((lambda *s: torch.randn(*s, dtype=torch.bfloat16) * 1.6)(B, M, Dm)), 'Wq': _w((lambda *s: torch.randn(*s, dtype=torch.bfloat16) * 0.8)(Dm, H, Dh) * Dm ** (-0.5)), 'Wk': _w((lambda *s: torch.randn(*s, dtype=torch.bfloat16) * 0.8)(Dm, H, Dh) * Dm ** (-0.5)), 'Wv': _w((lambda *s: torch.randn(*s, dtype=torch.bfloat16) * 1.6)(Dm, H, Dh) * Dm ** (-0.5)), 'Wo': _w((lambda *s: torch.randn(*s, dtype=torch.bfloat16) * 1.6)(H, Dh, Dm) * (H * Dh) ** (-0.5)), 'seg_len': seg}
    _A_in = _A_setup()

    def _B_setup():
        B, S, Dm, Df = (1, 2048, 512, 1792)
        return {'x': _w((lambda *s: torch.randn(*s, dtype=torch.bfloat16) * 0.1)(B, S, Dm)), 'w_gate': _w((lambda *s: torch.randn(*s, dtype=torch.bfloat16) * 0.4)(Dm, Df) * Dm ** (-0.5)), 'w_up': _w((lambda *s: torch.randn(*s, dtype=torch.bfloat16) * 0.4)(Dm, Df) * Dm ** (-0.5)), 'w_down': _w((lambda *s: torch.randn(*s, dtype=torch.bfloat16) * 0.4)(Df, Dm) * Df ** (-0.5))}
    _B_in = _B_setup()
    return {'A_x': _A_in['x'], 'A_mem0': _A_in['mem0'], 'A_Wq': _A_in['Wq'], 'A_Wk': _A_in['Wk'], 'A_Wv': _A_in['Wv'], 'A_Wo': _A_in['Wo'], 'A_seg_len': _A_in['seg_len'], 'B_x': _B_in['x'], 'B_w_gate': _B_in['w_gate'], 'B_w_up': _B_in['w_up'], 'B_w_down': _B_in['w_down']}

def reference(A_x, A_mem0, A_Wq, A_Wk, A_Wv, A_Wo, A_seg_len, B_x, B_w_gate, B_w_up, B_w_down):

    def _A_ref(x, mem0, Wq, Wk, Wv, Wo, seg_len):
        B, S, Dm = x.shape
        H, Dh = (Wq.shape[1], Wq.shape[2])
        M = mem0.shape[1]
        scale = Dh ** (-0.5)
        n_seg = S // seg_len
        L = M + seg_len
        idx = torch.arange(L)
        mask = (idx[:, None] < M) | (idx[:, None] >= idx[None, :])
        mem = mem0
        outs = []
        for s in range(n_seg):
            xs = x[:, s * seg_len:(s + 1) * seg_len, :].clone()
            h = torch.concatenate([mem, xs], axis=1)
            q = torch.einsum('btd,dhe->bhte', h, Wq)
            k = torch.einsum('btd,dhe->bhte', h, Wk)
            v = torch.einsum('btd,dhe->bhte', h, Wv)
            scores = torch.einsum('bhqe,bhke->bhqk', q, k) * scale
            scores = torch.where(mask[None, None], scores, -1000000000.0)
            p = _softmax(scores, axis=-1)
            o = torch.einsum('bhqk,bhke->bhqe', p, v)
            o = torch.einsum('bhte,hed->btd', o, Wo)
            mem = o[:, :M, :].clone()
            outs.append(o[:, M:, :])
        return torch.concatenate(outs, axis=1)

    def _B_ref(x, w_gate, w_up, w_down):
        g = torch.einsum('bsd,df->bsf', x, w_gate)
        u = torch.einsum('bsd,df->bsf', x, w_up)
        h = _gelu(g) * u
        return torch.einsum('bsf,fd->bsd', h, w_down)
    x = A_x
    xn = _layernorm(x, axis=-1)
    s = _A_ref(xn, A_mem0, A_Wq, A_Wk, A_Wv, A_Wo, A_seg_len)
    g = _silu(_B_ref(xn, B_w_gate, B_w_up, B_w_down))
    return x + s * g
```

```python
import re

TRANS = ("v_exp_f32", "v_log_f32", "v_rcp_f32", "v_rsq_f32", "v_sqrt_f32", "v_sin_f32", "v_cos_f32",
         "v_rcp_iflag_f32", "v_exp_f16", "v_rcp_f16")

def regs_of(tok):
    tok = tok.strip()
    neg = tok.lstrip("-|").rstrip("|")
    m = re.fullmatch(r"([vas])\[(\d+):(\d+)\]", neg)
    if m:
        return [(m.group(1), i) for i in range(int(m.group(2)), int(m.group(3)) + 1)]
    m = re.fullmatch(r"([vas])(\d+)", neg)
    if m:
        return [(m.group(1), int(m.group(2)))]
    if neg == "vcc":
        return [("s", "vcc_lo"), ("s", "vcc_hi")]
    if neg in ("vcc_lo", "vcc_hi", "m0"):
        return [("s", neg)]
    if neg == "exec":
        return [("s", "exec_lo"), ("s", "exec_hi")]
    if neg in ("exec_lo", "exec_hi"):
        return [("s", neg)]
    return []

def split_ops(s):
    out, depth, cur = [], 0, ""
    for ch in s:
        if ch in "[(":
            depth += 1
        if ch in "])":
            depth -= 1
        if ch == "," and depth == 0:
            out.append(cur.strip()); cur = ""
        else:
            cur += ch
    if cur.strip():
        out.append(cur.strip())
    return out

class Ins:
    __slots__ = ("text", "op", "cls", "defs", "uses", "ws", "label", "target", "uncond", "A", "C", "D", "passes",
                 "dpp", "perml", "rdlane", "wide", "dma", "trans", "lanesel", "opsel")
    def __init__(self, text):
        self.text = text
        self.label = None; self.target = None; self.uncond = False
        self.defs = set(); self.uses = set(); self.A = set(); self.C = (); self.D = (); self.passes = 0
        self.dpp = self.perml = self.rdlane = self.dma = self.trans = self.opsel = False
        self.wide = set(); self.lanesel = set()
        t = text.split(";")[0].strip()
        self.ws = 1
        if not t or t.startswith("."):
            self.cls = "none"; self.op = ""; self.ws = 0
            return
        if t.endswith(":"):
            self.cls = "label"; self.op = ""; self.label = t[:-1]; self.ws = 0
            return
        parts = t.split(None, 1)
        op = parts[0]; rest = parts[1] if len(parts) > 1 else ""
        self.op = op
        ops = split_ops(rest)
        mods = ""
        if ops:
            last = ops[-1].split(None, 1)
            if len(last) > 1 and not last[0].startswith("hwreg"):
                ops[-1] = last[0]; mods = last[1]
        R = [regs_of(o) for o in ops]
        def U(*idx):
            for i in idx:
                if i < len(R): self.uses.update(R[i])
        def Dd(*idx):
            for i in idx:
                if i < len(R): self.defs.update(R[i])
        base = re.sub(r"_(e32|e64|dpp|sdwa)$", "", op)
        if op.startswith("v_mfma") or op.startswith("v_smfmac"):
            self.cls = "mfma"
            self.passes = 8 if "32x32" in op else 4
            self.D = tuple(R[0]); Dd(0)
            if op.startswith("v_smfmac"):
                self.C = tuple(R[0]); self.A = set(R[1] + R[2] + R[3])
            else:
                self.C = tuple(R[3]); self.A = set(R[1] + R[2])
            self.uses = set(self.A) | set(self.C)
        elif op.startswith("v_"):
            self.cls = "valu"
            self.trans = base in TRANS
            self.dpp = op.endswith("_dpp") or "quad_perm" in mods or "row_" in mods or "wave_" in mods
            if op == "v_nop":
                pass
            elif base.startswith("v_cmpx"):
                raise ValueError("v_cmpx not supported")
            elif base.startswith("v_permlane") or base == "v_swap_b32":
                Dd(0, 1); U(0, 1); self.perml = base.startswith("v_permlane")
            elif base in ("v_readfirstlane_b32", "v_readlane_b32"):
                Dd(0); U(1, 2); self.rdlane = True
                if len(R) > 2: self.lanesel = set(R[2])
            elif base == "v_writelane_b32":
                Dd(0); U(0, 1, 2); self.lanesel = set(R[2])
            elif re.match(r"v_(add|sub|subrev|addc|subb|subbrev)_co_|v_div_scale|v_mad_u64_u32|v_mad_i64_i32", base):
                Dd(0, 1); U(*range(2, len(R)))
            else:
                Dd(0); U(*range(1, len(R)))
                if re.match(r"v_(fmac|mac|pk_fmac|dot\w*c_)", base) or self.dpp:
                    U(0)
                if base == "v_div_fmas_f32":
                    self.uses.update(regs_of("vcc"))
            if ("dst_sel:" in mods and "dst_sel:DWORD" not in mods):
                self.opsel = True; U(0)
        elif op.startswith("ds_"):
            self.cls = "ds"
            if op.startswith("ds_read") or op.startswith("ds_bpermute") or op.startswith("ds_permute") or op.startswith("ds_swizzle") or "_rtn_" in op:
                Dd(0); U(*range(1, len(R)))
            else:
                U(*range(len(R)))
        elif op.startswith("global_") or op.startswith("buffer_"):
            self.cls = "vmem"
            if op.startswith("global_load_lds") or (op.startswith("buffer_load") and re.search(r"\blds\b", mods)):
                U(*range(len(R))); self.dma = True
            elif "_load_" in op:
                Dd(0); U(*range(1, len(R)))
            elif "_store_" in op:
                U(*range(len(R)))
                if op.endswith("x4") or op.endswith("x3"):
                    self.wide = set(R[1] if op.startswith("global") else R[0])
            elif "_atomic_" in op:
                if op.startswith("global") and len(R) == 4:
                    Dd(0); U(1, 2, 3)
                else:
                    U(*range(len(R)))
                    if op.startswith("buffer") and re.search(r"\bsc0\b", mods): Dd(0)
            elif op in ("buffer_wbl2", "buffer_inv"):
                pass
            else:
                raise ValueError("unknown vmem " + text)
        elif op.startswith("s_"):
            self.cls = "salu"
            if op == "s_nop":
                self.ws = int(ops[0]) + 1
            elif op.startswith("s_cbranch") or op == "s_branch":
                self.target = ops[0]; self.uncond = op == "s_branch"
            elif op == "s_endpgm":
                self.uncond = True
            elif op.startswith("s_cmp") or op.startswith("s_bitcmp") or op in ("s_waitcnt", "s_barrier", "s_setprio"):
                U(*range(len(R)))
            else:
                Dd(0); U(*range(1, len(R)))
                if "saveexec" in op:
                    self.defs.update(regs_of("exec"))
        else:
            raise ValueError("unknown instruction " + text)

def isv(r): return r[0] in "va"

def need(p, c):
    n = 0
    if p.cls == "valu":
        vd = {r for r in p.defs if isv(r)}
        sd = {r for r in p.defs if not isv(r)}
        if vd:
            if c.cls == "mfma" and vd & c.uses: n = max(n, 2)
            if c.cls == "valu" and vd & c.uses:
                if c.dpp or c.perml: n = max(n, 2)
                if c.rdlane: n = max(n, 1)
                if p.trans and not c.trans: n = max(n, 1)
                if p.opsel: n = max(n, 1)
            if p.trans and c.cls in ("ds", "vmem") and vd & c.uses: n = max(n, 1)
        if sd:
            if c.cls == "valu" and sd & c.uses: n = max(n, 4 if (sd & c.lanesel or c.op.startswith("v_div_fmas")) else 2)
            if c.cls == "vmem" and sd & c.uses: n = max(n, 5)
    elif p.cls == "mfma":
        D = set(p.D)
        if c.cls == "mfma":
            if D & c.A: n = max(n, p.passes + 4)
            if D & set(c.C):
                if c.C == p.D and c.op == p.op: pass
                else: n = max(n, p.passes + 2)
            elif D & set(c.D):
                n = max(n, 0 if c.op == p.op else p.passes + 4)
        elif c.cls in ("valu", "ds", "vmem"):
            if D & (c.uses | c.defs): n = max(n, p.passes + 4)
            if c.cls == "valu" and set(p.C) & c.defs: n = max(n, p.passes - 1)
    elif p.cls == "salu":
        if ("s", "m0") in p.defs and c.dma: n = max(n, 1)
    elif p.cls == "vmem":
        if p.wide and p.wide & c.defs: n = max(n, 2 if c.cls in ("valu", "mfma") else 1)
    return n

MAXW = 12

def fix_hazards(lines):
    ins = [Ins(l) for l in lines]
    branches = {}
    for x in ins:
        if x.target: branches.setdefault(x.target, []).append(x)
    pos = None
    out = []
    seq = list(ins)
    idx = {id(x): i for i, x in enumerate(seq)}
    extra = [0] * len(seq)
    def search(c, i, dist, seen):
        best = 0
        j = i
        while True:
            dist += extra[j] if j != idx[id(c)] or dist > 0 else 0
            x = seq[j]
            if x.label is not None:
                for b in branches.get(x.label, []):
                    bi = idx[id(b)]
                    key = (bi, dist)
                    if key not in seen and dist + 1 < MAXW:
                        seen.add(key)
                        best = max(best, search(c, bi, dist + b.ws, seen))
            j -= 1
            if j < 0: break
            p = seq[j]
            if p.uncond: break
            if p.ws:
                r = need(p, c)
                if r - dist > best: best = r - dist
                dist += p.ws
            if dist >= MAXW: break
        return best
    total = 0
    for i, c in enumerate(seq):
        if c.cls in ("valu", "mfma", "ds", "vmem"):
            n = search(c, i, 0, set())
            if n > 0:
                extra[i] = n; total += n
    for i, c in enumerate(seq):
        if extra[i]:
            out.append(f"    s_nop {extra[i]-1}")
        out.append(c.text)
    return out, total

class Asm:
    def __init__(self):
        self.lines = []
        self.nlab = 0
    def __call__(self, text):
        for l in text.split("\n"):
            l = l.strip()
            if not l: continue
            if l.endswith(":") or l.startswith("."):
                self.lines.append(l)
            else:
                self.lines.append("    " + l)
    def newlabel(self, stem="L"):
        self.nlab += 1
        return f"{stem}_{self.nlab}"
    def label(self, name):
        self.lines.append(name + ":")
    def finish(self):
        out, total = fix_hazards(self.lines)
        return "\n".join(out) + "\n"

def v(a, n=1): return f"v{a}" if n == 1 else f"v[{a}:{a+n-1}]"
def a(x, n=1): return f"a{x}" if n == 1 else f"a[{x}:{x+n-1}]"
def s(x, n=1): return f"s{x}" if n == 1 else f"s[{x}:{x+n-1}]"
def r(x, n=1):
    return v(x, n) if x < 256 else a(x - 256, n)

def kernel_text(name, body, nptr=14, vgpr=512, accum=256, first=True):
    t = ""
    if first:
        t += '.amdgcn_target "amdgcn-amd-amdhsa--gfx950"\n'
    t += f""".text
.globl {name}
.p2align 8
.type {name},@function
{name}:
{body}
.section .rodata,"a"
.p2align 6
.amdhsa_kernel {name}
  .amdhsa_next_free_vgpr {vgpr}
  .amdhsa_next_free_sgpr 102
  .amdhsa_accum_offset {accum}
  .amdhsa_group_segment_fixed_size 0
  .amdhsa_kernarg_size {nptr*8}
  .amdhsa_user_sgpr_count 2
  .amdhsa_user_sgpr_kernarg_segment_ptr 1
  .amdhsa_system_sgpr_workgroup_id_x 1
.end_amdhsa_kernel
"""
    return t

if __name__ == "__main__":
    k = Asm()
    k("""
    v_mov_b32 v1, 0
    v_mfma_f32_16x16x32_bf16 v[4:7], v[0:3], v[8:11], 0
    L1:
    v_add_f32 v20, v4, v5
    v_cmp_eq_u32 vcc, v1, v2
    v_cndmask_b32 v3, v1, v2, vcc
    v_mov_b32_dpp v9, v3 quad_perm:[2,3,0,1] row_mask:0xf bank_mask:0xf
    v_mfma_f32_16x16x32_bf16 v[4:7], v[0:3], v[8:11], v[4:7]
    s_cbranch_scc1 L1
    s_endpgm
    """)
    print(k.finish())
```

```python
from asmgen import *
from layout import *
import math

L_K, L_MS, L_T, L_O, L_WO, L_WSTR, L_VOFF = 0, 8192, 16384, 20480, 24576, 34816, 32768
vMw = 127
SEL, ONES, PMZ, SENT, IDX, vM, vPst, vMst, vTw, vTr, vOw, vOr, vWo, NEGC = 104, 108, 112, 116, 117, 118, 119, 120, 121, 122, 123, 124, 125, 126
A0, KF, DQ, DK, DV, VX, X0, PUBR = 0, 32, 64, 72, 80, 88, 96, 100
WQ, WK, WV = 256, 384, 128
sWS, sDBG, sH, sW = 4, 6, 8, 9
sM, sPst, sPld, sKV, sPUB = (10, 12), (14, 16), (18, 20), 22, 24
sSTEP, sBUD, sHI, sM16, sM0K = 26, 27, 28, 30, 32
sM0V = 33
sFK, sFP = 36, 38
FLV = 24
sT = 40
CEXP = (128 ** -0.5) * math.log2(math.e)
def f2u(x):
    import struct
    return struct.unpack("<I", struct.pack("<f", x))[0]

def wfrag(base, t, c): return r(base + (t * 8 + c) * 8, 8)
SM = "v_smfmac_f32_16x16x64_bf16"
MF = "v_mfma_f32_16x16x32_bf16"
MF16 = "v_mfma_f32_16x16x16_bf16"

def add64(k, dst, src, off):
    k(f"s_add_u32 {s(dst)}, {s(src)}, {off}\n s_addc_u32 {s(dst+1)}, {s(src+1)}, 0")

def heads_prologue(k, exit_label):
    k(f"""
    s_load_dwordx2 {s(sT,2)}, s[0:1], {KA_MEM0}
    s_load_dwordx4 {s(sT+4,4)}, s[0:1], {KA_WQ}
    s_load_dwordx4 {s(sT+8,4)}, s[0:1], {KA_WV}
    v_and_b32 v1, 63, v0                 ; lane
    v_lshrrev_b32 v2, 4, v1              ; g
    v_and_b32 v3, 15, v1                 ; n
    v_lshrrev_b32 v4, 2, v3              ; n/4
    v_and_b32 v5, 3, v1                  ; n%4
    v_lshlrev_b32 {v(vM)}, 4, v1
    ; weight DMA source offset (QKV): ((l/4)%4*4 + l/16)*8192 + (l%4)*16 + h*256 + w*64
    v_lshlrev_b32 v6, 2, v4
    v_add_u32 v6, v6, v2
    v_lshlrev_b32 v6, 13, v6
    v_lshl_add_u32 v6, v5, 4, v6
    s_lshl_b32 {s(sT+12)}, {s(sH)}, 8
    s_lshl_b32 {s(sT+13)}, {s(sW)}, 6
    s_add_u32 {s(sT+12)}, {s(sT+12)}, {s(sT+13)}
    s_lshl_b32 {s(sT+13)}, {s(sW)}, 19
    s_add_u32 {s(sT+12)}, {s(sT+12)}, {s(sT+13)}
    v_add_u32 v6, {s(sT+12)}, v6
    ; Wo source offset: h*131072 + (l/8)*1024 + (l%8)*16 + w*128
    v_lshrrev_b32 v7, 3, v1
    v_lshlrev_b32 v7, 10, v7
    v_and_b32 v8, 7, v1
    v_lshl_add_u32 v7, v8, 4, v7
    s_lshl_b32 {s(sT+12)}, {s(sH)}, 17
    s_lshl_b32 {s(sT+13)}, {s(sW)}, 7
    s_add_u32 {s(sT+12)}, {s(sT+12)}, {s(sT+13)}
    v_add_u32 v7, {s(sT+12)}, v7
    s_mul_i32 {s(sT+14)}, {s(sW)}, {L_WSTR}
    s_add_u32 {s(sT+14)}, {s(sT+14)}, {L_WO}
    v_add_u32 {v(vWo)}, {s(sT+14)}, {v(vM)}
    """)
    sRING = sT + 14
    k(f"""
    s_and_b32 {s(sT+15)}, {s(sW)}, 1
    s_lshl_b32 {s(sT+15)}, {s(sT+15)}, 2
    s_lshr_b32 {s(sT+16)}, {s(sH)}, 3
    s_add_u32 {s(sT+15)}, {s(sT+15)}, {s(sT+16)}   ; c_o
    s_lshr_b32 {s(sT+16)}, {s(sH)}, 1
    s_and_b32 {s(sT+16)}, {s(sT+16)}, 3            ; a_o
    s_and_b32 {s(sT+17)}, {s(sH)}, 1
    s_lshl_b32 {s(sT+17)}, {s(sT+17)}, 1
    s_lshr_b32 {s(sT+18)}, {s(sW)}, 1
    s_add_u32 {s(sT+17)}, {s(sT+17)}, {s(sT+18)}   ; g_o
    s_lshl_b32 {s(sT+18)}, {s(sT+15)}, 10
    s_lshl_b32 {s(sT+19)}, {s(sT+16)}, 8
    s_add_u32 {s(sT+18)}, {s(sT+18)}, {s(sT+19)}
    s_lshl_b32 {s(sT+19)}, {s(sT+17)}, 6
    s_add_u32 {s(sT+18)}, {s(sT+18)}, {s(sT+19)}
    v_lshlrev_b32 v9, 4, v2
    v_lshl_add_u32 v9, v5, 2, v9
    v_add_u32 {v(vMst)}, {s(sT+18)}, v9
    s_lshl_b32 {s(sT+18)}, {s(sT+17)}, 11
    s_lshl_b32 {s(sT+19)}, {s(sT+15)}, 7
    s_add_u32 {s(sT+18)}, {s(sT+18)}, {s(sT+19)}
    s_lshl_b32 {s(sT+19)}, {s(sT+16)}, 5
    s_add_u32 {s(sT+18)}, {s(sT+18)}, {s(sT+19)}
    v_and_b32 v9, 1, v2
    v_lshlrev_b32 v9, 10, v9
    v_lshrrev_b32 v10, 1, v2
    v_lshl_add_u32 v9, v10, 4, v9
    v_lshl_add_u32 v9, v5, 1, v9
    v_add_u32 v9, {s(sT+18)}, v9
    v_lshl_add_u32 v10, v4, 2, v2
    v_lshlrev_b32 v10, 12, v10
    v_lshl_add_u32 v10, v5, 4, v10
    s_lshl_b32 {s(sT+18)}, {s(sW)}, 16
    s_lshl_b32 {s(sT+19)}, {s(sH)}, 6
    s_add_u32 {s(sT+18)}, {s(sT+18)}, {s(sT+19)}
    v_add_u32 {v(vPst)}, {s(sT+18)}, v10
    """)
    add64(k, sM[0], sWS, WS_M + 4096)
    add64(k, sM[1], sWS, WS_M + 8192 + 4096)
    add64(k, sPst[0], sWS, WS_P)
    add64(k, sPst[1], sWS, WS_P + 262144)
    k(f"""
    s_lshl_b32 {s(sT+18)}, {s(sH)}, 2
    s_add_u32 {s(sT+18)}, {s(sT+18)}, {s(sW)}
    s_lshl_b32 {s(sT+19)}, {s(sT+18)}, 11
    """)
    add64(k, sPld[0], sPst[0], s(sT+19))
    add64(k, sPld[1], sPst[1], s(sT+19))
    k(f"s_lshl_b32 {s(sT+19)}, {s(sT+18)}, 10")
    add64(k, sPUB, sWS, WS_PUB)
    add64(k, sPUB, sPUB, s(sT+19))
    k(f"s_lshl_b32 {s(sT+19)}, {s(sT+18)}, 12")
    add64(k, sKV, sWS, WS_KV)
    add64(k, sKV, sKV, s(sT+19))
    k(f"""
    s_mov_b32 {s(sHI)}, 0xcccccccc
    s_mov_b32 {s(sHI+1)}, 0xcccccccc
    s_mov_b32 {s(sM16)}, 0x000f000f
    s_mov_b32 {s(sM16+1)}, 0x000f000f
    s_lshl_b32 {s(sT+19)}, {s(sW)}, 11
    s_add_u32 {s(sM0K)}, {s(sT+19)}, {L_K}
    s_add_u32 {s(sM0V)}, {s(sRING)}, {L_VOFF - 2048}
    s_lshl_b32 {s(sT+19)}, {s(sW)}, 10
    v_add_u32 {v(vMw)}, {s(sT+19)}, {v(vM)}
    v_mov_b32 {v(SENT)}, -1
    s_waitcnt lgkmcnt(0)
    global_load_ushort v11, v9, {s(sT,2)}
    global_load_ushort v12, v9, {s(sT,2)} offset:8
    global_store_dword {v(vM)}, {v(SENT)}, {s(sPld[0],2)} sc1
    global_store_dword {v(vM)}, {v(SENT)}, {s(sPld[0],2)} offset:1024 sc1
    global_store_dword {v(vM)}, {v(SENT)}, {s(sPld[1],2)} sc1
    global_store_dword {v(vM)}, {v(SENT)}, {s(sPld[1],2)} offset:1024 sc1
    global_store_dword {v(vMst)}, {v(SENT)}, {s(sM[1],2)} offset:-4096 sc1
    """)
    pieces = []
    for c in range(8):
        pieces += [("q", c), ("k", c), ("v", c)]
    for st in range(2):
        for kq in range(4):
            pieces.append(("o", st * 4 + kq))
    base_of = {"q": sT + 4, "k": sT + 6, "v": sT + 8, "o": sT + 10}
    def dma(p):
        kind, c = pieces[p]
        slot = p % 8
        for u in range(4):
            k(f"s_add_u32 m0, {s(sRING)}, {slot*4096 + u*1024}")
            if kind == "o":
                off = (c % 4) * 32768 + u * 8192 + (c // 4) * 512
                k(f"v_add_u32 v13, {off}, v7")
            else:
                k(f"v_xor_b32 v13, {((c//2) << 19) | ((c%2) << 21) | (u << 17)}, v6")
            k(f"global_load_lds_dwordx4 v13, {s(base_of[kind],2)}")
    for p in range(8):
        dma(p)
    k(f"""
    s_waitcnt vmcnt(37)
    v_lshl_or_b32 v11, v12, 16, v11
    global_store_dword {v(vMst)}, v11, {s(sM[0],2)} offset:-4096 sc1
    """)
    k(f"""
    ; IDX: half = (n/2)%2
    v_and_b32 v14, 2, v1
    v_cmp_eq_u32 vcc, 0, v14
    v_mov_b32 v15, 0xeeee
    v_mov_b32 v16, 0x4444
    v_cndmask_b32 {v(IDX)}, v15, v16, vcc
    ; SEL: lane (g,m): one-hot j = 2*(m/4) + m%4 for m%4 < 2 -> dword m/4 holds 1.0 in half m%4
    v_mov_b32 v15, 0x3f80
    v_lshlrev_b32 v16, 4, v5
    v_lshlrev_b32 v15, v16, v15
    v_cmp_gt_u32 vcc, 2, v5
    v_cndmask_b32 v15, 0, v15, vcc
    """)
    for j in range(4):
        k(f"v_cmp_eq_u32 vcc, {j}, v4\n v_cndmask_b32 {v(SEL+j)}, 0, v15, vcc")
    for j in range(4):
        k(f"v_mov_b32 {v(ONES+j)}, 0x3f803f80")
    k(f"""
    v_mov_b32 {v(PMZ+1)}, 0
    v_mov_b32 {v(PMZ+2)}, 0
    v_mov_b32 {v(NEGC)}, {hex(f2u(-CEXP))}
    ; T write: n*32 + (g ^ n/4)*8 + w*1024 + L_T
    v_xor_b32 v15, v2, v4
    v_lshlrev_b32 v15, 3, v15
    v_lshl_add_u32 v15, v3, 5, v15
    s_lshl_b32 {s(sT+19)}, {s(sW)}, 10
    s_add_u32 {s(sT+19)}, {s(sT+19)}, {L_T}
    v_add_u32 {v(vTw)}, {s(sT+19)}, v15
    ; T read: (4g + r)*32 + (c' ^ g)*8 , r = n/4, c' = n%4
    v_xor_b32 v15, v5, v2
    v_lshlrev_b32 v15, 3, v15
    v_lshl_add_u32 v16, v2, 2, v4
    v_lshl_add_u32 {v(vTr)}, v16, 5, v15
    ; O write: w*512 + g*128 + row*16, row = 2*(n/4) + (n&1)   (valid lanes n%4>=2)
    v_and_b32 v15, 1, v1
    v_lshl_add_u32 v15, v4, 1, v15
    v_lshlrev_b32 v15, 4, v15
    v_lshl_add_u32 {v(vOr)}, v2, 7, v15
    s_lshl_b32 {s(sT+19)}, {s(sW)}, 9
    v_add_u32 {v(vOw)}, {s(sT+19)}, {v(vOr)}
    ; v17: Wq/Wk natural cols: (8g + r)*64 + c'*8 ; v18: Wv: (8g+r)*64 + c'*16 ; v19: Wo: (4g + r%2)*128 + c'*32 + (r/2)*8
    v_lshl_add_u32 v15, v2, 3, v4
    v_lshlrev_b32 v15, 6, v15
    v_add_u32 v15, {s(sRING)}, v15
    v_lshl_add_u32 v17, v5, 3, v15
    v_lshl_add_u32 v18, v5, 4, v15
    v_and_b32 v15, 1, v4
    v_lshl_add_u32 v15, v2, 2, v15
    v_lshlrev_b32 v15, 7, v15
    v_lshl_add_u32 v15, v5, 5, v15
    v_lshrrev_b32 v16, 1, v4
    v_lshl_add_u32 v15, v16, 3, v15
    v_add_u32 v19, {s(sRING)}, v15
    """)
    extra = 1
    for p in range(32):
        kind, c = pieces[p]
        slot = p % 8
        later = min(7, 31 - p) * 4
        if p < 8: later += 1
        if 8 < p < 16: later += 1
        k(f"s_waitcnt vmcnt({later})")
        if p == 8:
            k(f"""
            s_lshl_b32 {s(sT+19)}, s35, 3
            s_lshl_b64 {s(sT+16,2)}, 1, {s(sT+19)}
            v_mov_b32 v20, {s(sT+16)}
            v_mov_b32 v21, {s(sT+17)}
            v_mov_b32 v22, {DBG_HBAR*4}
            s_mov_b64 exec, 1
            global_atomic_add_x2 v22, v[20:21], {s(sDBG,2)} sc1
            s_mov_b64 exec, -1
            """)
        for t in range(2):
            for jq in range(4):
                if kind == "o":
                    dst = 24 + t * 8 + jq * 2
                    k(f"ds_read_b64_tr_b16 {v(dst,2)}, v19 offset:{slot*4096 + (2*(jq%2) + 16*(jq//2))*128 + t*16}")
                else:
                    base = {"q": WQ, "k": WK, "v": WV}[kind]
                    dst = base + (t * 8 + c) * 8 + jq * 2
                    toff = t * 8 if kind == "v" else t * 32
                    ar = 18 if kind == "v" else 17
                    k(f"ds_read_b64_tr_b16 {r(dst,2)}, v{ar} offset:{slot*4096 + (4*(jq%2) + 32*(jq//2))*64 + toff}")
        k("s_waitcnt lgkmcnt(0)")
        if kind == "o":
            for q in range(4):
                k(f"ds_write_b128 {v(vWo)}, {v(24+4*q,4)} offset:{slot*4096 + q*1024}")
            k("s_waitcnt lgkmcnt(0)")
        if p + 8 < 32:
            dma(p + 8)
    from roles import wait_ln
    wait_ln(k, exit_label, 20)
    k(f"""
    s_lshl_b32 {s(sT+19)}, {s(sH)}, 7
    s_add_u32 {s(sT+18)}, {s(sT+19)}, {WS_FLG + F_KV}
    """)
    add64(k, sFK, sWS, s(sT+18))
    k(f"""
    s_lshl_b32 {s(sT+18)}, {s(sW)}, 2
    s_add_u32 {s(sT+18)}, {s(sT+18)}, {F_PUB - F_KV}
    """)
    add64(k, sFP, sFK, s(sT+18))
    k(f"s_mov_b32 {s(sSTEP)}, -1")
    kv_poll(k, 0, exit_label, extra=1)
    kv_poll(k, 1, exit_label, extra=1)
    k(f"""
    s_mov_b32 m0, {s(sM0K)}
    global_load_lds_dwordx4 {v(vM)}, {s(sKV,2)} sc1
    global_load_lds_dwordx4 {v(vM)}, {s(sKV,2)} offset:1024 sc1
    s_mov_b32 m0, {s(sM0V)}
    global_load_lds_dwordx4 {v(vM)}, {s(sKV,2)} offset:2048 sc1
    global_load_lds_dwordx4 {v(vM)}, {s(sKV,2)} offset:3072 sc1
    """)
    add64(k, sKV, sKV, 0x80000)
    lw = k.newlabel("Lhb")
    k(f"""
    v_mov_b32 v22, {DBG_HBAR*4}
    {lw}:
    global_load_dwordx2 v[20:21], v22, {s(sDBG,2)} sc1
    s_sub_u32 {s(sBUD)}, {s(sBUD)}, 1
    s_cbranch_scc1 {exit_label}
    s_waitcnt vmcnt(0)
    v_sad_u8 v23, v20, 0, 0
    v_sad_u8 v23, v21, 0, v23
    v_cmp_gt_u32 vcc, 128, v23
    s_cbranch_vccnz {lw}
    v_readfirstlane_b32 {s(sT)}, v20
    v_readfirstlane_b32 {s(sT+1)}, v21
    s_mov_b32 {s(sSTEP)}, 0
    s_or_b32 {s(sT)}, {s(sT)}, {s(sT+1)}
    s_and_b32 {s(sT)}, {s(sT)}, 0x80808080
    """)

def kv_poll(k, part, exit_label, extra):
    lw = k.newlabel("Lkv")
    k(f"""
    s_add_u32 {s(sT)}, {s(sSTEP)}, {extra}
    s_lshr_b32 {s(sT)}, {s(sT)}, 1
    s_min_u32 {s(sT)}, {s(sT)}, 31
    {lw}:
    global_load_dwordx4 {v(FLV,4)}, {v(PMZ+1)}, {s(sFK,2)} offset:{16*part} sc1
    s_sub_u32 {s(sBUD)}, {s(sBUD)}, 1
    s_cbranch_scc1 {exit_label}
    s_waitcnt vmcnt(0)
    v_min_u32 {v(FLV)}, {v(FLV)}, {v(FLV+1)}
    v_min3_u32 {v(FLV)}, {v(FLV)}, {v(FLV+2)}, {v(FLV+3)}
    v_cmp_ge_u32 vcc, {s(sT)}, {v(FLV)}
    s_cbranch_vccnz {lw}
    """)

def wo_off(f):
    st, kq, th = f // 8, (f // 2) % 4, f % 2
    return (st * 4 + kq) * 4096 + th * 2048


class Cfg:
    d1 = 0
    d2 = 0
    nv_pre = 0
CFG = Cfg()

def pack_v(k):
    for t in range(2):
        k(f"v_pk_add_f32 {v(DV+4*t,2)}, {v(DV+4*t,2)}, {v(DV+4*t+2,2)}")
    for t in range(2):
        k(f"v_cvt_pk_bf16_f32 {v(PUBR+2+t)}, {v(DV+4*t)}, {v(DV+4*t+1)}")

def heads_step(k, par, sf, exit_label, done_label, cold, stamp=None):
    st = stamp if stamp else (lambda i: None)
    DPPM = "row_mask:0xf bank_mask:0xf"
    SETB = KF + 24
    def poll2(b):
        k(f"global_load_dwordx4 {v(b,4)}, {v(vMw)}, {s(sM[par],2)} offset:-4096 sc1")
        k(f"global_load_dwordx4 {v(b+4,4)}, {v(vMw)}, {s(sM[par],2)} sc1")
    poll2(A0)
    for j in range(3):
        k(f"v_xor_b32 {v(X0+j)}, {(j+1)*1024}, {v(vMw)}")
    for j in range(12):
        k(f"v_mov_b64 {v(DQ+2*j,2)}, 0")
    poll2(SETB)
    def qk(c, which, areg=None):
        d, wb, t = [(DQ, WQ, 0), (DK, WK, 0), (DQ + 4, WQ, 1), (DK + 4, WK, 1)][which]
        k(f"{SM} {v(d,4)}, {v(A0+4*c if areg is None else areg,4)}, {wfrag(wb,t,c)}, {v(IDX)}")
    lp, la, lb, lj = k.newlabel("Lq"), k.newlabel("Lqa"), k.newlabel("Lqb"), k.newlabel("Lqj")
    k(f"{lp}:")
    for b, lab in ((A0, la), (SETB, lb)):
        k(f"""
        s_waitcnt vmcnt(2)
        v_max_u32 {v(X0+3)}, {v(b)}, {v(b+4)}
        v_cmp_eq_u32 vcc, -1, {v(X0+3)}
        s_cbranch_vccz {lab}
        """)
        poll2(b)
    k(f"""
    s_sub_u32 {s(sBUD)}, {s(sBUD)}, 1
    s_cbranch_scc0 {lp}
    s_branch {exit_label}
    """)
    for b, lab in ((SETB, lb), (A0, la)):
        k(f"{lab}:")
        k(f"ds_write_b128 {v(vMw)}, {v(b,4)} offset:{L_MS}")
        k(f"ds_write_b128 {v(vMw)}, {v(b+4,4)} offset:{L_MS+4096}")
        for wh in range(4): qk(0, wh, b)
        k("s_waitcnt lgkmcnt(0)")
        st(0)
        k("s_barrier")
        for c in range(2, 8):
            k(f"ds_read_b128 {v(A0+4*c,4)}, {v(X0+c//2-1)} offset:{L_MS + (c%2)*4096}")
        k(f"ds_read_b128 {v(VX,4)}, {v(vWo)} offset:{L_VOFF}")
        k(f"ds_read_b128 {v(VX+4,4)}, {v(vWo)} offset:{L_VOFF + 1024}")
        for wh in range(4): qk(1, wh, b + 4)
        for c in range(2):
            for t in range(2):
                k(f"{SM} {v(DV+4*t,4)}, {v(b+4*c,4)}, {wfrag(WV,t,c)}, {v(IDX)}")
        if b == SETB:
            k(f"s_branch {lj}")
    k(f"{lj}:")
    vq = [(c, t) for c in range(2, 8) for t in range(2)]
    def vm(n=1):
        for _ in range(n):
            if vq:
                c, t = vq.pop(0)
                k(f"{SM} {v(DV+4*t,4)}, {v(A0+4*c,4)}, {wfrag(WV,t,c)}, {v(IDX)}")
    def kread(f):
        k(f"ds_read_b128 {v(KF+4*f,4)}, {v(vM)} offset:{L_K + f*1024}")
    for c in range(2, 8):
        if c == 2: k("s_waitcnt lgkmcnt(7)")
        if c == 3: k("s_waitcnt lgkmcnt(0)")
        qk(c, 0)
        if c == 3:
            k(f"s_mov_b32 m0, {s(sM0V)}\n s_waitcnt vmcnt(0)")
        if c >= 4: kread(2 * (c - 4))
        qk(c, 1)
        if c == 3:
            k(f"global_load_lds_dwordx4 {v(vM)}, {s(sKV,2)} offset:2048 sc1")
        if c >= 4: kread(2 * (c - 4) + 1)
        qk(c, 2)
        if c == 3:
            k(f"global_load_lds_dwordx4 {v(vM)}, {s(sKV,2)} offset:3072 sc1")
        if c == 4:
            k(f"global_store_dword {v(vM)}, {v(SENT)}, {s(sPld[1-par],2)} {sf}")
        if c == 5:
            k(f"global_store_dword {v(vM)}, {v(SENT)}, {s(sPld[1-par],2)} offset:1024 {sf}")
        qk(c, 3)
    if par == 1:
        ll = k.newlabel("Llast")
        k(f"s_cmp_eq_u32 {s(sSTEP)}, 63\n s_cbranch_scc1 {ll}")
        kc = Asm()
        kc(f"{ll}:")
        for (c, t) in vq:
            kc(f"{SM} {v(DV+4*t,4)}, {v(A0+4*c,4)}, {wfrag(WV,t,c)}, {v(IDX)}")
        for t in range(2):
            kc(f"v_pk_add_f32 {v(DK+4*t,2)}, {v(DK+4*t,2)}, {v(DK+4*t+2,2)}")
            kc(f"v_cvt_pk_bf16_f32 {v(PUBR+t)}, {v(DK+4*t)}, {v(DK+4*t+1)}")
        pack_v(kc)
        kc(f"""global_store_dwordx4 {v(vM)}, {v(PUBR,4)}, {s(sPUB,2)} sc1
        v_mov_b32 {v(FLV)}, 64
        s_waitcnt vmcnt(0)
        s_mov_b64 exec, 1
        global_store_dword {v(PMZ+1)}, {v(FLV)}, {s(sFP,2)} sc1
        s_mov_b64 exec, -1
        s_branch {done_label}""")
        cold.append("\n".join(kc.lines))
    vm(2)
    for t in range(2):
        k(f"v_pk_add_f32 {v(DQ+4*t,2)}, {v(DQ+4*t,2)}, {v(DQ+4*t+2,2)}")
        k(f"v_pk_add_f32 {v(DK+4*t,2)}, {v(DK+4*t,2)}, {v(DK+4*t+2,2)}")
        k(f"v_cvt_pk_bf16_f32 {v(X0+2*t+1)}, {v(DQ+4*t)}, {v(DQ+4*t+1)}")
        k(f"v_cvt_pk_bf16_f32 {v(X0+2*t)}, {v(DK+4*t)}, {v(DK+4*t+1)}")
        k(f"ds_write_b64 {v(vTw)}, {v(X0+2*t,2)} offset:{t*512}")
    k(f"v_mov_b32 {v(PUBR)}, {v(X0)}\n v_mov_b32 {v(PUBR+1)}, {v(X0+2)}")
    vm(2)
    k("s_waitcnt lgkmcnt(0)")
    st(1)
    k("s_barrier")
    F = DQ
    for kk in range(4):
        for hh in range(2):
            k(f"ds_read_b64_tr_b16 {v(F+4*kk+2*hh,2)}, {v(vTr)} offset:{L_T + kk*1024 + hh*512}")
    k(f"s_mov_b32 m0, {s(sM0K)}")
    vm(1)
    k(f"global_load_lds_dwordx4 {v(vM)}, {s(sKV,2)} sc1")
    vm(1)
    k(f"global_load_lds_dwordx4 {v(vM)}, {s(sKV,2)} offset:1024 sc1")
    vm(2)
    Sm, Sx0, Sx1 = 0, 4, 8
    for kk in range(4):
        k(f"s_waitcnt lgkmcnt({6-2*kk})")
        for d, areg in ((Sx0, KF + 4*kk), (Sx1, KF + 16 + 4*kk), (Sm, F + 4*kk)):
            k(f"{MF} {v(d,4)}, {v(areg,4)}, {v(F+4*kk,4)}, {'0' if kk == 0 else v(d,4)}")
    add64(k, sKV, sKV, 0x80000)
    U, MA, MB, MC, MD, PB = 40, 45, 46, 47, 39, 48
    k(f"s_mov_b64 vcc, {s(sHI,2)}")
    fbuf = {}
    def wo_read(f, b):
        fbuf[f] = b
        k(f"ds_read_b128 {v(b,4)}, {v(vWo)} offset:{wo_off(f)}")
        k(f"ds_read_b128 {v(b+4,4)}, {v(vWo)} offset:{wo_off(f)+1024}")
    vm(1); wo_read(0, 64); vm(1); wo_read(1, 72); vm(1); wo_read(2, 16); vm(1)
    k(f"""
    v_max3_f32 {v(MA)}, {v(Sx0)}, {v(Sx0+1)}, {v(Sx0+2)}
    v_max3_f32 {v(MB)}, {v(Sx0+3)}, {v(Sx1)}, {v(Sx1+1)}
    v_max3_f32 {v(MA)}, {v(MA)}, {v(Sx1+2)}, {v(Sx1+3)}
    v_max3_f32 {v(MB)}, {v(MB)}, {v(Sm)}, {v(Sm+1)}
    v_max_f32 {v(MC)}, {v(MA)}, {v(MB)}
    v_max_f32 {v(MD)}, {v(MA)}, {v(MB)}
    v_cndmask_b32_dpp {v(U+4)}, {v(Sm+1)}, {v(Sm)}, vcc quad_perm:[2,3,2,3] {DPPM}
    v_cndmask_b32_dpp {v(U)}, {v(Sx1)}, {v(Sx0)}, vcc quad_perm:[2,3,2,3] {DPPM}
    v_permlane16_swap_b32 {v(MC)}, {v(MD)}
    v_cndmask_b32_dpp {v(U+1)}, {v(Sx1+1)}, {v(Sx0+1)}, vcc quad_perm:[2,3,2,3] {DPPM}
    v_max_f32 {v(MA)}, {v(MC)}, {v(MD)}
    v_max_f32 {v(MB)}, {v(MC)}, {v(MD)}
    v_cndmask_b32_dpp {v(U+2)}, {v(Sx1+2)}, {v(Sx0+2)}, vcc quad_perm:[2,3,2,3] {DPPM}
    v_cndmask_b32_dpp {v(U+3)}, {v(Sx1+3)}, {v(Sx0+3)}, vcc quad_perm:[2,3,2,3] {DPPM}
    v_permlane32_swap_b32 {v(MA)}, {v(MB)}
    v_mul_f32 {v(U+4)}, {hex(f2u(CEXP))}, {v(U+4)}
    v_max_f32 {v(MC)}, {v(MA)}, {v(MB)}
    v_pk_mul_f32 {v(U,2)}, {v(U,2)}, {v(NEGC,2)} op_sel_hi:[1,0] neg_lo:[0,1] neg_hi:[0,1]
    v_pk_mul_f32 {v(U+2,2)}, {v(U+2,2)}, {v(NEGC,2)} op_sel_hi:[1,0] neg_lo:[0,1] neg_hi:[0,1]
    """)
    for i in (4, 0, 1, 2, 3):
        k(f"v_fmac_f32_dpp {v(U+i)}, {v(MC)}, {v(NEGC)} quad_perm:[2,3,2,3] {DPPM}")
    k(f"v_exp_f32 {v(U+4)}, {v(U+4)}")
    k(f"v_exp_f32 {v(U)}, {v(U)}")
    k(f"v_exp_f32 {v(U+1)}, {v(U+1)}")
    k(f"v_mov_b32_dpp {v(MD)}, {v(U+4)} quad_perm:[0,1,0,1] {DPPM}")
    k(f"v_exp_f32 {v(U+2)}, {v(U+2)}")
    k(f"v_exp_f32 {v(U+3)}, {v(U+3)}")
    k(f"v_cvt_pk_bf16_f32 {v(PMZ)}, {v(U+4)}, {v(MD)}")
    k(f"v_cvt_pk_bf16_f32 {v(PB)}, {v(U)}, {v(U+1)}")
    k(f"v_cvt_pk_bf16_f32 {v(PB+1)}, {v(U+2)}, {v(U+3)}")
    k(f"v_cvt_pk_bf16_f32 {v(PMZ+3)}, {v(U+4)}, {v(MD)}")
    pack_v(k)
    k(f"v_mov_b32_dpp {v(PB+2)}, {v(PB)} quad_perm:[0,1,0,1] {DPPM}")
    k(f"v_mov_b32_dpp {v(PB+3)}, {v(PB+1)} quad_perm:[0,1,0,1] {DPPM}")
    O0, O1, SU = 52, 56, 60
    k(f"{MF16} {v(SU,4)}, {v(ONES,2)}, {v(PMZ,2)}, 0")
    wo_read(3, 24)
    k(f"{MF16} {v(O0,4)}, {v(PUBR+2,2)}, {v(PMZ,2)}, 0")
    wo_read(4, 0)
    k(f"{MF16} {v(O1,4)}, {v(PUBR+2,2)}, {v(PMZ+2,2)}, 0")
    k(f"global_store_dwordx4 {v(vM)}, {v(PUBR,4)}, {s(sPUB,2)} sc1")
    k(f"{MF} {v(SU,4)}, {v(ONES,4)}, {v(PB,4)}, {v(SU,4)}")
    wo_read(5, 8)
    k(f"{MF} {v(O0,4)}, {v(VX,4)}, {v(PB,4)}, {v(O0,4)}")
    wo_read(6, 80)
    k(f"{MF} {v(O1,4)}, {v(VX+4,4)}, {v(PB,4)}, {v(O1,4)}")
    add64(k, sPUB, sPUB, 0x20000)
    k(f"v_rcp_f32 {v(MB)}, {v(SU)}")
    k(f"s_mov_b64 exec, {s(sHI,2)}")
    OP = 40
    for j in range(4):
        k(f"v_pk_mul_f32 {v(O0+2*j,2)}, {v(O0+2*j,2)}, {v(MB,2)} op_sel_hi:[1,0]")
        k(f"v_cvt_pk_bf16_f32 {v(OP+j)}, {v(O0+2*j)}, {v(O0+2*j+1)}")
    k(f"s_waitcnt lgkmcnt(8)")
    k(f"ds_write_b128 {v(vOw)}, {v(OP,4)} offset:{L_O}")
    k(f"s_mov_b64 exec, -1")
    wo_read(7, 88); wo_read(8, 96)
    DW, AW = 48, 32
    for j in range(8):
        k(f"v_mov_b64 {v(DW+2*j,2)}, 0")
    k("s_waitcnt lgkmcnt(4)")
    st(2)
    k("s_barrier")
    for q in range(4):
        k(f"ds_read_b128 {v(AW+4*q,4)}, {v(vOr)} offset:{L_O + q*512}")
    pend = ["f7", "f7", "f8", "f8", "a0", "a1", "a2", "a3"]
    def need(tag):
        if tag in pend:
            last = len(pend) - 1 - pend[::-1].index(tag)
            del pend[:last + 1]
            k(f"s_waitcnt lgkmcnt({len(pend)})")
    nxt = 9
    for f in range(16):
        s_, kq, th = f // 8, (f // 2) % 4, f % 2
        need(f"a{kq}"); need(f"f{f}")
        k(f"{SM} {v(DW+8*s_+4*th,4)}, {v(AW+4*kq,4)}, {v(fbuf[f],8)}, {v(IDX)}")
        if nxt < 16:
            if len(pend) > 12:
                del pend[:len(pend) - 12]
                k("s_waitcnt lgkmcnt(12)")
            wo_read(nxt, fbuf[f]); pend += [f"f{nxt}"] * 2
            nxt += 1
        if f >= 10:
            j = f - 10
            if j < 4:
                th2, rb = j // 2, j % 2
                k(f"v_cvt_pk_bf16_f32 {v(fbuf[7]+j)}, {v(DW+4*th2+rb)}, {v(DW+4*th2+rb+2)}")
            elif j == 4:
                k(f"global_store_dwordx4 {v(vPst)}, {v(fbuf[7],4)}, {s(sPst[par],2)} {sf}")
    for j in range(4):
        th2, rb = j // 2, j % 2
        k(f"v_cvt_pk_bf16_f32 {v(fbuf[7]+4+j)}, {v(DW+8+4*th2+rb)}, {v(DW+8+4*th2+rb+2)}")
    k(f"global_store_dwordx4 {v(vPst)}, {v(fbuf[7]+4,4)}, {s(sPst[par],2)} offset:2048 {sf}")
    st(3)
    def poll(b):
        k(f"global_load_dwordx4 {v(b,4)}, {v(vM)}, {s(sPld[par],2)} sc1")
        k(f"global_load_dwordx4 {v(b+4,4)}, {v(vM)}, {s(sPld[par],2)} offset:1024 sc1")
    poll(8)
    k(f"s_add_u32 {s(sSTEP)}, {s(sSTEP)}, 1")
    if CFG.d1: k(f"s_nop {CFG.d1-1}")
    poll(16)
    lp, lj = k.newlabel("Lpo"), k.newlabel("Lpj")
    RD = 96
    k(f"{lp}:")
    for b in (8, 16):
        k(f"""
        s_waitcnt vmcnt(2)
        v_max_u32 {v(RD+4)}, {v(b)}, {v(b+4)}
        {MF} {v(RD,4)}, {v(SEL,4)}, {v(b,4)}, 0
        v_cmp_eq_u32 vcc, -1, {v(RD+4)}
        {MF} {v(RD,4)}, {v(SEL,4)}, {v(b+4,4)}, {v(RD,4)}
        s_cbranch_vccz {lj}
        """)
        poll(b)
    k(f"""
    s_sub_u32 {s(sBUD)}, {s(sBUD)}, 1
    s_cbranch_scc0 {lp}
    s_branch {exit_label}
    {lj}:
    v_add_f32_dpp {v(RD)}, {v(RD)}, {v(RD)} row_ror:8 {DPPM}
    v_add_f32_dpp {v(RD+1)}, {v(RD+1)}, {v(RD+1)} row_ror:8 {DPPM}
    v_add_f32_dpp {v(RD)}, {v(RD)}, {v(RD)} row_ror:4 {DPPM}
    v_add_f32_dpp {v(RD+1)}, {v(RD+1)}, {v(RD+1)} row_ror:4 {DPPM}
    s_mov_b64 exec, {s(sM16,2)}
    v_cvt_pk_bf16_f32 {v(RD+4)}, {v(RD)}, {v(RD+1)}
    global_store_dword {v(vMst)}, {v(RD+4)}, {s(sM[1-par],2)} offset:-4096 {sf}
    global_store_dword {v(vMst)}, {v(SENT)}, {s(sM[par],2)} offset:-4096 {sf}
    v_mov_b32 {v(FLV)}, {s(sSTEP)}
    s_mov_b64 exec, 1
    global_store_dword {v(PMZ+1)}, {v(FLV)}, {s(sFP,2)} sc1
    s_mov_b64 exec, -1
    """)
    kv_poll(k, par, exit_label, extra=1)
    st(4)

def heads_loop(k, sf, exit_label, done_label, stamp=None):
    cold = []
    top = k.newlabel("Lhl")
    k(f"{top}:")
    heads_step(k, 0, sf, exit_label, done_label, cold, stamp)
    heads_step(k, 1, sf, exit_label, done_label, cold, stamp)
    k(f"s_branch {top}")
    for c in cold:
        k(c)
```

```python
WS_M    = 0x000000
WS_P    = 0x010000
WS_STAMP= 0x0A0000
WS_FLG  = 0x0C0000
F_KV    = 0x0000
F_PUB   = 0x1000
F_H     = 0x2000
F_O     = 0x2200
WS_XN   = 0x100000
WS_KV   = 0x1000000
WS_PUB  = 0x3100000
WS_Q    = 0x4000000
WS_O    = 0x5000000
WS_H    = 0x6100000
KA_X, KA_MEM0, KA_WQ, KA_WK, KA_WV, KA_WO, KA_SEG, KA_BX, KA_WG, KA_WU, KA_WD, KA_OUT, KA_DBG, KA_WS = [8*i for i in range(14)]
DBG_HBAR  = 0
DBG_LN    = 32
```

```python
from asmgen import *
from layout import *
import math, struct

MF = "v_mfma_f32_16x16x32_bf16"
MF16 = "v_mfma_f32_16x16x16_bf16"
DPPM = "row_mask:0xf bank_mask:0xf"
sWS, sDBG, sRK, sW, sBUD = 4, 6, 8, 9, 27
LOG2E = math.log2(math.e)
CEXP = (128 ** -0.5) * LOG2E
BUDGET = 400000
def f2u(x): return struct.unpack("<I", struct.pack("<f", x))[0]
def fx(x): return hex(f2u(x))

def add64(k, dst, src, off):
    k(f"s_add_u32 {s(dst)}, {s(src)}, {off}\n s_addc_u32 {s(dst+1)}, {s(src+1)}, 0")

def lane_ids(k, l=1, g=2, n=3, r=4, c=5):
    k(f"""
    v_and_b32 v{l}, 63, v0
    v_lshrrev_b32 v{g}, 4, v{l}
    v_and_b32 v{n}, 15, v{l}
    v_lshrrev_b32 v{r}, 2, v{n}
    v_and_b32 v{c}, 3, v{l}
    """)

def load_weights(k, pieces, sring, stride, tmp=6):
    vs, va, vn, vv = tmp, tmp + 1, tmp + 2, tmp + 3
    k(f"""
    v_lshrrev_b32 v{va}, 2, v1
    v_mul_u32_u24 v{va}, {stride}, v{va}
    v_add_u32 v{vs}, v{vs}, v{va}
    v_lshl_add_u32 v{vs}, v5, 4, v{vs}
    v_lshl_add_u32 v{va}, v2, 3, v4
    v_lshlrev_b32 v{va}, 6, v{va}
    v_add_u32 v{va}, {s(sring)}, v{va}
    v_lshl_add_u32 v{vn}, v5, 3, v{va}
    v_lshl_add_u32 v{vv}, v5, 4, v{va}
    """)
    N = len(pieces)
    def dma(p):
        base, off, dest, mode = pieces[p]
        for u in range(4):
            k(f"s_add_u32 m0, {s(sring)}, {(p % 8)*4096 + u*1024}")
            k(f"v_add_u32 v{va}, {off + u*16*stride}, v{vs}")
            k(f"global_load_lds_dwordx4 v{va}, {s(base,2)}")
    for p in range(min(8, N)):
        dma(p)
    for p in range(N):
        base, off, dest, mode = pieces[p]
        k(f"s_waitcnt vmcnt({min(7, N-1-p)*4})")
        for t in range(2):
            for a_ in range(2):
                for hh in range(2):
                    o = (p % 8)*4096 + (32*a_ + 4*hh)*64 + (t*32 if mode == "n" else t*8)
                    k(f"ds_read_b64_tr_b16 {r(dest(t, a_) + 2*hh, 2)}, v{vn if mode == 'n' else vv} offset:{o}")
        if p + 8 < N:
            k("s_waitcnt lgkmcnt(0)")
            dma(p + 8)
    k("s_waitcnt lgkmcnt(0)")

def wait_ln(k, exit_label, vt=10):
    lw = k.newlabel("Lln")
    k(f"""
    v_mov_b32 v{vt+1}, {DBG_LN*4}
    {lw}:
    global_load_dword v{vt}, v{vt+1}, {s(sDBG,2)} sc1
    s_sub_u32 {s(sBUD)}, {s(sBUD)}, 1
    s_cbranch_scc1 {exit_label}
    s_waitcnt vmcnt(0)
    v_cmp_gt_u32 vcc, 32, v{vt}
    s_cbranch_vccnz {lw}
    """)

def poll_flags(k, vdst, vaddr, sbase, sneed, exit_label):
    lw = k.newlabel("Lpf")
    k(f"""
    {lw}:
    global_load_dword v{vdst}, v{vaddr}, {s(sbase,2)} sc1
    s_sub_u32 {s(sBUD)}, {s(sBUD)}, 1
    s_cbranch_scc1 {exit_label}
    s_waitcnt vmcnt(0)
    v_cmp_gt_u32 vcc, {s(sneed)}, v{vdst}
    s_cbranch_vccnz {lw}
    """)

class Fill:
    def __init__(self, k): self.k = k; self.q = []
    def add(self, text):
        self.q += [l.strip() for l in text.split("\n") if l.strip()]
    def put(self, n=2):
        for _ in range(n):
            if self.q: self.k(self.q.pop(0))
    def flush(self):
        while self.q: self.k(self.q.pop(0))

def stream_role(k, kind, exit_label):
    sV = 36
    sA, sB, sC = 40, 42, 44
    sRING, sHD, sPART, sI, sXN, sO1, sO2, sP1, sP2, sFL, sM0, sT = 46, 47, 48, 49, 50, 52, 54, 56, 58, 60, 62, 64
    qkv = kind == "qkv"
    nm = 6 if qkv else 4
    WB = [256, 384, 128] if qkv else [256, 384]
    stride = 8192 if qkv else 3584
    if qkv:
        k(f"s_load_dwordx4 {s(sA,4)}, s[0:1], {KA_WQ}\n s_load_dwordx2 {s(sC,2)}, s[0:1], {KA_WV}")
    else:
        k(f"s_load_dwordx4 {s(sA,4)}, s[0:1], {KA_WG}")
    lane_ids(k)
    k(f"""
    s_lshr_b32 {s(sHD)}, {s(sV)}, 1
    s_and_b32 {s(sPART)}, {s(sV)}, 1
    s_lshl_b32 {s(sRING)}, {s(sW)}, 15
    s_lshl_b32 {s(sT)}, {s(sHD)}, 8
    s_lshl_b32 {s(sT+1)}, {s(sW)}, 6
    s_add_u32 {s(sT)}, {s(sT)}, {s(sT+1)}
    v_mov_b32 v6, {s(sT)}
    s_waitcnt lgkmcnt(0)
    """)
    pieces = []
    for c in range(8):
        for m, wb in enumerate(WB):
            mode = "n" if (qkv and m < 2) else "v"
            pieces.append((sA + 2*m, c*64*stride, (lambda t, a_, wb=wb, c=c: wb + (t*16 + 2*c + a_)*4), mode))
    load_weights(k, pieces, sRING, stride)
    vL, vRD, vFL, vFV = 104, 105, 106, 107
    ACC, XB, ST = 0, 48, 80
    k(f"""
    v_lshlrev_b32 v{vL}, 4, v1
    v_mov_b32 v{vRD}, v{vL}
    s_lshl_b32 {s(sT)}, {s(sPART)}, 15
    s_lshl_b32 {s(sT+1)}, {s(sW)}, 13
    s_add_u32 {s(sT)}, {s(sT)}, {s(sT+1)}
    s_add_u32 {s(sT)}, {s(sT)}, {WS_XN}
    s_mov_b32 {s(sM0)}, {s(sT+1)}
    s_mov_b32 {s(sI)}, 0
    """)
    add64(k, sXN, sWS, s(sT))
    if qkv:
        k(f"""
        s_lshl_b32 {s(sT)}, {s(sPART)}, 19
        s_lshl_b32 {s(sT+1)}, {s(sHD)}, 14
        s_add_u32 {s(sT)}, {s(sT)}, {s(sT+1)}
        s_lshr_b32 {s(sT+2)}, {s(sT)}, 1
        s_add_u32 {s(sT)}, {s(sT)}, {WS_KV - 0x100000}
        s_add_u32 {s(sT+2)}, {s(sT+2)}, {WS_Q - 0x80000}
        """)
        add64(k, sP1, sWS, s(sT)); add64(k, sP2, sWS, s(sT+2))
        add64(k, sO1, sP1, 0x100000); add64(k, sO2, sP2, 0x80000)
        vK, vV, vQ = 108, 109, 110
        k(f"""
        s_lshr_b32 {s(sT)}, {s(sW)}, 1
        s_lshl_b32 {s(sT)}, {s(sT)}, 12
        s_and_b32 {s(sT+1)}, {s(sW)}, 1
        s_lshl_b32 {s(sT+1)}, {s(sT+1)}, 10
        s_add_u32 {s(sT)}, {s(sT)}, {s(sT+1)}
        v_add_u32 v{vK}, {s(sT)}, v{vL}
        v_add_u32 v{vK+3}, 8192, v{vK}
        s_lshl_b32 {s(sT)}, {s(sW)}, 12
        v_add_u32 v{vV}, {s(sT)}, v{vL}
        s_lshl_b32 {s(sT)}, {s(sW)}, 10
        s_add_u32 {s(sT)}, {s(sT)}, 2048
        v_add_u32 v{vQ}, {s(sT)}, v{vL}
        s_lshl_b32 {s(sT)}, {s(sHD)}, 7
        s_lshl_b32 {s(sT+1)}, {s(sPART)}, 4
        s_add_u32 {s(sT)}, {s(sT)}, {s(sT+1)}
        s_lshl_b32 {s(sT+1)}, {s(sW)}, 2
        s_add_u32 {s(sT)}, {s(sT)}, {s(sT+1)}
        s_add_u32 {s(sT)}, {s(sT)}, {WS_FLG + F_KV}
        v_mov_b32 v{vFL}, {s(sT)}
        """)
    else:
        k(f"""
        s_lshl_b32 {s(sT)}, {s(sPART)}, 17
        s_lshl_b32 {s(sT+1)}, {s(sHD)}, 2
        s_add_u32 {s(sT+1)}, {s(sT+1)}, {s(sW)}
        s_lshl_b32 {s(sT+2)}, {s(sT+1)}, 10
        s_add_u32 {s(sT)}, {s(sT)}, {s(sT+2)}
        s_add_u32 {s(sT)}, {s(sT)}, {WS_H - 0x40000 + 0x10000}
        """)
        add64(k, sP1, sWS, s(sT))
        add64(k, sO1, sP1, 0x40000 - 0x10000)
        k(f"""
        s_lshl_b32 {s(sT)}, {s(sPART)}, 8
        s_lshl_b32 {s(sT+1)}, {s(sT+1)}, 2
        s_add_u32 {s(sT)}, {s(sT)}, {s(sT+1)}
        s_add_u32 {s(sT)}, {s(sT)}, {WS_FLG + F_H}
        v_mov_b32 v{vFL}, {s(sT)}
        """)
    for j in range(0, 48, 2):
        k(f"v_mov_b64 {v(ACC+j,2)}, 0")
    k("s_barrier")
    wait_ln(k, exit_label)
    def xdma():
        out = []
        for hlf in range(2):
            out.append(f"s_add_u32 m0, {s(sM0)}, {hlf*4096}")
            for u in range(4):
                out.append(f"global_load_lds_dwordx4 v{vL if hlf == 0 else vFV}, {s(sXN,2)} offset:{u*1024} sc1")
        return out
    k(f"v_add_u32 v{vFV}, 4096, v{vL}")
    for l in xdma(): k(l)
    k("s_waitcnt vmcnt(0)")
    def acc(t, m): return ACC + (t*nm + m)*4
    def epilogue(t, F, cur):
        if qkv:
            o1, o2 = (sO1, sO2) if cur else (sP1, sP2)
            for m, stg in ((0, ST), (2, ST + 4)):
                for e in range(2):
                    for hh in range(2):
                        F.add(f"v_cvt_pk_bf16_f32 v{stg+2*e+hh}, v{acc(t,m+e)+2*hh}, v{acc(t,m+e)+2*hh+1}")
                if m == 0: F.add(f"global_store_dwordx4 v{110}, {v(stg,4)}, {s(o2,2)} offset:{-2048 if t == 0 else 2048} sc1")
                else: F.add(f"global_store_dwordx4 v{108 if t == 0 else 111}, {v(stg,4)}, {s(o1,2)} sc1")
            for e in range(2):
                for hh in range(2):
                    F.add(f"v_cvt_pk_bf16_f32 v{ST+8+4*e+2*t+hh}, v{acc(t,4+e)+2*hh}, v{acc(t,4+e)+2*hh+1}")
                if t == 1:
                    F.add(f"global_store_dwordx4 v{109}, {v(ST+8+4*e,4)}, {s(o1,2)} offset:{2048+1024*e} sc1")
        else:
            c1 = -2 * math.sqrt(2 / math.pi) * LOG2E
            T0 = ST + 8
            for e in range(2):
                for i in range(4):
                    g_, u_, x = acc(t, e) + i, acc(t, 2 + e) + i, T0 + 4*e + i
                    F.add(f"""
                    v_mul_f32 v{x}, v{g_}, v{g_}
                    v_mul_f32 v{u_}, v{u_}, v{g_}
                    v_fmaak_f32 v{x}, v{x}, v112, {fx(c1)}
                    v_mul_f32 v{x}, v{x}, v{g_}
                    v_exp_f32 v{x}, v{x}
                    """)
            for e in range(2):
                for i in range(4):
                    x = T0 + 4*e + i
                    F.add(f"v_add_f32 v{x}, 1.0, v{x}")
            for e in range(2):
                for i in range(4):
                    x = T0 + 4*e + i
                    F.add(f"v_rcp_f32 v{x}, v{x}")
            for e in range(2):
                for i in range(4):
                    u_, x = acc(t, 2 + e) + i, T0 + 4*e + i
                    F.add(f"v_mul_f32 v{x}, v{x}, v{u_}")
            for j in range(4):
                F.add(f"v_cvt_pk_bf16_f32 v{ST+4*t+j}, v{T0+2*j}, v{T0+2*j+1}")
            F.add(f"global_store_dwordx4 v{vL}, {v(ST+4*t,4)}, {s(sO1 if cur else sP1,2)} sc1")
    if not qkv:
        k(f"v_mov_b32 v112, {fx(-2 * math.sqrt(2 / math.pi) * LOG2E * 0.044715)}")
    top = k.newlabel("Lst")
    k(f"{top}:")
    k("s_barrier")
    NB = 8
    def xread(f): k(f"ds_read_b128 {v(XB + (f % NB)*4, 4)}, v{vRD} offset:{f*1024}")
    for f in range(4): xread(f)
    add64(k, sXN, sXN, 0x10000)
    k(f"s_xor_b32 {s(sM0)}, {s(sM0)}, 0x8000")
    F = Fill(k)
    st_late = 2 if qkv else 1
    for t in range(2):
        if t == 0:
            epilogue(1, F, False)
            F.q = F.q[:6] + xdma() + F.q[6:] if False else F.q
            dm = xdma()
        else:
            epilogue(0, F, True)
            dm = []
        for kk in range(16):
            f = t*16 + kk
            if f + 4 < 32: xread(f + 4)
            k(f"s_waitcnt lgkmcnt({min(4, 31 - f)})")
            xb = v(XB + (f % NB)*4, 4)
            for m in range(nm):
                w = r(WB[m // 2] + ((m % 2)*16 + kk)*4, 4)
                d = v(acc(t, m), 4)
                c = "0" if kk == 0 else d
                if qkv and m >= 4: k(f"{MF} {d}, {xb}, {w}, {c}")
                else: k(f"{MF} {d}, {w}, {xb}, {c}")
                if m == nm - 1 and dm and kk < 10:
                    k(dm.pop(0))
                elif kk >= 1 or m >= 2:
                    F.put(1 if qkv else 2)
        assert not dm
        F.flush()
    k(f"""
    v_mov_b32 v113, {s(sI)}
    s_waitcnt vmcnt({st_late})
    s_mov_b64 exec, 1
    global_store_dword v{vFL}, v113, {s(sWS,2)} sc1
    s_mov_b64 exec, -1
    v_xor_b32 v{vRD}, 0x8000, v{vRD}
    """)
    if qkv:
        k(f"s_mov_b64 {s(sP1,2)}, {s(sO1,2)}\n s_mov_b64 {s(sP2,2)}, {s(sO2,2)}")
        add64(k, sO1, sO1, 0x100000); add64(k, sO2, sO2, 0x80000)
    else:
        add64(k, sP1, sO1, 0x10000); add64(k, sO1, sO1, 0x40000)
    k(f"""
    s_add_u32 {s(sI)}, {s(sI)}, 1
    s_cmp_lt_u32 {s(sI)}, 32
    s_cbranch_scc1 {top}
    """)
    F = Fill(k); epilogue(1, F, False); F.flush()
    k(f"""
    v_mov_b32 v113, 32
    s_waitcnt vmcnt(0)
    s_mov_b64 exec, 1
    global_store_dword v{vFL}, v113, {s(sWS,2)} sc1
    s_branch {exit_label}
    """)

def xg_reduce(k, op, a_, b_, t0, t1):
    k(f"""
    v_mov_b32 v{t0}, v{a_}
    v_mov_b32 v{t1}, v{a_}
    v_permlane16_swap_b32 v{t0}, v{t1}
    {op} v{t0}, v{t0}, v{t1}
    v_mov_b32 v{t1}, v{t0}
    v_permlane32_swap_b32 v{t0}, v{t1}
    {op} v{b_}, v{t0}, v{t1}
    """)

def bf_round(k, x):
    k(f"v_cvt_pk_bf16_f32 v{x}, v{x}, v{x}\n v_and_b32 v{x}, 0xffff0000, v{x}")

def ln_role(k):
    sX, sT, sO = 40, 44, 42
    k(f"s_load_dwordx2 {s(sX,2)}, s[0:1], {KA_X}")
    lane_ids(k)
    k(f"""
    s_lshl_b32 {s(sT)}, {s(sRK)}, 2
    s_add_u32 {s(sT)}, {s(sT)}, {s(sW)}
    s_lshl_b32 {s(sT+1)}, {s(sT)}, 14
    v_lshlrev_b32 v6, 10, v3
    v_lshl_add_u32 v6, v2, 4, v6
    v_add_u32 v6, {s(sT+1)}, v6
    s_waitcnt lgkmcnt(0)
    """)
    XR, U = 16, 128
    for kk in range(16):
        k(f"global_load_dwordx4 {v(XR+4*kk,4)}, v6, {s(sX,2)} offset:{kk*64}")
    k(f"""
    s_lshl_b32 {s(sT+2)}, {s(sT)}, 7
    s_add_u32 {s(sT+2)}, {s(sT+2)}, {WS_FLG}
    v_and_b32 v7, 31, v1
    v_lshlrev_b32 v7, 2, v7
    v_add_u32 v7, {s(sT+2)}, v7
    v_mov_b32 v8, 0
    global_store_dword v7, v8, {s(sWS,2)} sc1
    s_add_u32 {s(sT+1)}, {s(sT+1)}, {WS_XN}
    v_lshlrev_b32 v9, 4, v1
    v_add_u32 v9, 4096, v9
    v_add_u32 v10, 8192, v9
    v_mov_b64 v[12:13], 0
    v_mov_b64 v[14:15], 0
    """)
    add64(k, sO, sWS, s(sT+1))
    for kk in range(16):
        k(f"s_waitcnt vmcnt({16-kk})")
        for j in range(4):
            x = XR + 4*kk + j; u = U + 8*kk + 2*j
            k(f"v_lshlrev_b32 v{u}, 16, v{x}\n v_and_b32 v{u+1}, 0xffff0000, v{x}")
            k(f"v_pk_add_f32 {v(12+2*(j%2),2)}, {v(12+2*(j%2),2)}, {v(u,2)}")
    k("v_pk_add_f32 v[12:13], v[12:13], v[14:15]\n v_add_f32 v12, v12, v13")
    xg_reduce(k, "v_add_f32", 12, 12, 14, 15)
    k(f"v_mul_f32 v12, {fx(-1.0/512)}, v12\n v_mov_b32 v11, v12")
    bf_round(k, 11)
    k("v_mov_b64 v[14:15], 0\n v_mov_b64 v[80:81], 0")
    for p in range(64):
        u = U + 2*p; t = 84 + 2*(p % 4); a_ = (14, 80)[p % 2]
        k(f"v_pk_add_f32 {v(t,2)}, {v(u,2)}, v[12:13] op_sel_hi:[1,0]")
        k(f"v_pk_fma_f32 {v(a_,2)}, {v(t,2)}, {v(t,2)}, {v(a_,2)}")
    k("v_pk_add_f32 v[14:15], v[14:15], v[80:81]\n v_add_f32 v14, v14, v15")
    xg_reduce(k, "v_add_f32", 14, 14, 80, 81)
    k(f"v_mul_f32 v14, {fx(1.0/512)}, v14")
    bf_round(k, 14)
    k(f"v_add_f32 v14, {fx(1e-5)}, v14")
    bf_round(k, 14)
    k("v_sqrt_f32 v14, v14")
    bf_round(k, 14)
    k("v_rcp_f32 v14, v14\n v_mov_b32 v12, v11")
    for kk in range(16):
        for j in range(4):
            x = XR + 4*kk + j; u = U + 8*kk + 2*j
            k(f"""
            v_pk_add_f32 {v(u,2)}, {v(u,2)}, v[12:13] op_sel_hi:[1,0]
            v_cvt_pk_bf16_f32 v{u+1}, v{u}, v{u+1}
            v_lshlrev_b32 v{u}, 16, v{u+1}
            v_and_b32 v{u+1}, 0xffff0000, v{u+1}
            v_pk_mul_f32 {v(u,2)}, {v(u,2)}, v[14:15] op_sel_hi:[1,0]
            v_cvt_pk_bf16_f32 v{x}, v{u}, v{u+1}
            """)
        k(f"global_store_dwordx4 v{9 + kk//8}, {v(XR+4*kk,4)}, {s(sO,2)} offset:{(kk%8)*1024 - 4096} sc1")
    lsk = k.newlabel("Llns")
    k(f"""
    s_waitcnt vmcnt(0)
    s_barrier
    s_cmp_lg_u32 {s(sW)}, 0
    s_cbranch_scc1 {lsk}
    v_mov_b32 v7, {DBG_LN*4}
    v_mov_b32 v8, 1
    s_mov_b64 exec, 1
    global_atomic_add v7, v8, {s(sDBG,2)} sc1
    s_mov_b64 exec, -1
    {lsk}:
    """)

def attn_role(k, exit_label):
    sKV, sQ, sPUB, sO, sI, sN1, sN2, sT = 40, 42, 44, 46, 48, 49, 50, 52
    sMK = 60
    vL, vL2, vF1, vF2, vF3, vTw, vTr, ONES, NEGB, vO1 = 6, 7, 8, 9, 10, 11, 12, 16, 13, 14
    Q, K, V, PB_, S, FK = 32, 64, 96, 128, 144, 176
    k(f"""
    v_lshlrev_b32 v{vL}, 4, v1
    v_add_u32 v{vL}, 4096, v{vL}
    v_add_u32 v{vL2}, 8192, v{vL}
    v_add_u32 v{vO1}, {0x20000}, v{vL}
    s_lshl_b32 {s(sT)}, {s(sW)}, 19
    s_lshl_b32 {s(sT+1)}, {s(sRK)}, 14
    s_add_u32 {s(sT)}, {s(sT)}, {s(sT+1)}
    s_add_u32 {s(sT+1)}, {s(sT)}, {WS_KV}
    """)
    add64(k, sKV, sWS, s(sT+1))
    k(f"s_lshr_b32 {s(sT+1)}, {s(sT)}, 1\n s_add_u32 {s(sT+1)}, {s(sT+1)}, {WS_Q}")
    add64(k, sQ, sWS, s(sT+1))
    k(f"s_lshr_b32 {s(sT+1)}, {s(sT)}, 2\n s_add_u32 {s(sT+1)}, {s(sT+1)}, {WS_PUB}")
    add64(k, sPUB, sWS, s(sT+1))
    k(f"""
    s_lshl_b32 {s(sT)}, {s(sW)}, 18
    s_lshl_b32 {s(sT+1)}, {s(sRK)}, 12
    s_add_u32 {s(sT)}, {s(sT)}, {s(sT+1)}
    s_add_u32 {s(sT)}, {s(sT)}, {WS_O}
    """)
    add64(k, sO, sWS, s(sT))
    k(f"""
    s_lshl_b32 {s(sT)}, {s(sRK)}, 7
    s_and_b32 {s(sT+1)}, {s(sW)}, 1
    s_lshl_b32 {s(sT+1)}, {s(sT+1)}, 4
    s_add_u32 {s(sT+1)}, {s(sT+1)}, {s(sT)}
    s_add_u32 {s(sT+1)}, {s(sT+1)}, {WS_FLG + F_KV}
    v_lshlrev_b32 v{vF1}, 2, v5
    v_add_u32 v{vF2}, {s(sT)}, v{vF1}
    v_add_u32 v{vF2}, {WS_FLG + F_PUB}, v{vF2}
    v_add_u32 v{vF1}, {s(sT+1)}, v{vF1}
    s_lshl_b32 {s(sT)}, {s(sW)}, 7
    s_lshl_b32 {s(sT+1)}, {s(sRK)}, 2
    s_add_u32 {s(sT)}, {s(sT)}, {s(sT+1)}
    s_add_u32 {s(sT)}, {s(sT)}, {WS_FLG + F_O}
    v_mov_b32 v{vF3}, {s(sT)}
    s_lshl_b32 {s(sT)}, {s(sW)}, 12
    v_xor_b32 v15, v2, v4
    v_lshlrev_b32 v15, 3, v15
    v_lshl_add_u32 v15, v3, 5, v15
    v_add_u32 v{vTw}, {s(sT)}, v15
    v_xor_b32 v15, v5, v2
    v_lshlrev_b32 v15, 3, v15
    v_lshl_add_u32 v20, v2, 2, v4
    v_lshl_add_u32 v15, v20, 5, v15
    v_add_u32 v{vTr}, {s(sT)}, v15
    v_mov_b32 v{NEGB}, {fx(-1e9 / 128 ** -0.5)}
    v_lshlrev_b32 v15, 2, v2
    s_lshr_b32 {s(sN1)}, {s(sW)}, 1
    s_add_u32 {s(sN1)}, {s(sN1)}, 1
    s_add_u32 {s(sN2)}, {s(sW)}, 1
    s_mov_b32 {s(sI)}, 0
    """)
    for i in range(4):
        k(f"v_add_u32 v20, {i}, v15\n v_cmp_le_u32 {s(sMK+2*i,2)}, v20, v3")
        k(f"v_mov_b32 v{ONES+i}, 0x3f803f80")
    wait_ln(k, exit_label, 20)
    top = k.newlabel("Lat")
    k(f"{top}:")
    poll_flags(k, 20, vF1, sWS, sN1, exit_label)
    for f in range(8):
        k(f"global_load_dwordx4 {v(Q+4*f,4)}, v{vL}, {s(sQ,2)} offset:{f*1024-4096} sc1")
    for f in range(8):
        o = (f//2)*4096 + (f%2)*1024
        k(f"global_load_dwordx4 {v(K+4*f,4)}, v{vL if o < 8192 else vL2}, {s(sKV,2)} offset:{o%8192-4096} sc1")
    for f in range(8):
        o = (f//2)*4096 + (f%2)*1024 + 2048
        k(f"global_load_dwordx4 {v(V+4*f,4)}, v{vL if o < 8192 else vL2}, {s(sKV,2)} offset:{o%8192-4096} sc1")
    k("s_waitcnt vmcnt(8)")
    S00, S10, S11, SM0, SM1 = S, S+4, S+8, S+12, S+16
    for kk in range(4):
        for d, tq, tk in ((S00, 0, 0), (S10, 1, 0), (S11, 1, 1)):
            k(f"{MF} {v(d,4)}, {v(K+16*tk+4*kk,4)}, {v(Q+16*tq+4*kk,4)}, {'0' if kk == 0 else v(d,4)}")
    for d in (S00, S11):
        for i in range(4):
            k(f"v_cndmask_b32 v{d+i}, v{NEGB}, v{d+i}, {s(sMK+2*i,2)}")
    MX0, MX1, T0, T1 = 20, 21, 22, 23
    k(f"""
    v_max3_f32 v{MX0}, v{S00}, v{S00+1}, v{S00+2}
    v_max3_f32 v{MX1}, v{S10}, v{S10+1}, v{S10+2}
    v_max_f32 v{MX0}, v{MX0}, v{S00+3}
    v_max3_f32 v{MX1}, v{MX1}, v{S10+3}, v{S11}
    v_max3_f32 v{MX1}, v{MX1}, v{S11+1}, v{S11+2}
    v_max_f32 v{MX1}, v{MX1}, v{S11+3}
    """)
    poll_flags(k, 24, vF2, sWS, sN2, exit_label)
    for w in range(4):
        k(f"global_load_dwordx4 {v(PB_+4*w,4)}, v{vL}, {s(sPUB,2)} offset:{w*1024-4096} sc1")
    for w in range(4):
        k(f"s_waitcnt vmcnt({3-w})")
        k(f"ds_write_b32 v{vTw}, v{PB_+4*w} offset:{w*1024}")
        k(f"ds_write_b32 v{vTw}, v{PB_+4*w+1} offset:{w*1024+512}")
    for kk in range(4):
        for hh in range(2):
            k(f"ds_read_b64_tr_b16 {v(FK+4*kk+2*hh,2)}, v{vTr} offset:{kk*1024 + hh*512}")
    for kk in range(4):
        k(f"s_waitcnt lgkmcnt({6-2*kk})")
        for d, tq in ((SM0, 0), (SM1, 1)):
            k(f"{MF} {v(d,4)}, {v(FK+4*kk,4)}, {v(Q+16*tq+4*kk,4)}, {'0' if kk == 0 else v(d,4)}")
    k(f"v_max3_f32 v{MX0}, v{MX0}, v{SM0}, v{SM0+1}\n v_max3_f32 v{MX1}, v{MX1}, v{SM1}, v{SM1+1}")
    xg_reduce(k, "v_max_f32", MX0, MX0, T0, T1)
    xg_reduce(k, "v_max_f32", MX1, MX1, 24, 25)
    k(f"v_mul_f32 v{MX0}, {fx(-CEXP)}, v{MX0}\n v_mul_f32 v{MX1}, {fx(-CEXP)}, v{MX1}")
    els = [(SM0, MX0), (SM0+1, MX0), (SM1, MX1), (SM1+1, MX1)] + [(S00+i, MX0) for i in range(4)] + [(S10+i, MX1) for i in range(8)]
    for x, m in els:
        k(f"v_fmamk_f32 v{x}, v{x}, {fx(CEXP)}, v{m}")
    for x, m in els:
        k(f"v_exp_f32 v{x}, v{x}")
    PM0, PM1, P0, P1 = 192, 196, 200, 204
    for pm, sm in ((PM0, SM0), (PM1, SM1)):
        k(f"v_cvt_pk_bf16_f32 v{pm}, v{sm}, v{sm+1}\n v_mov_b32 v{pm+1}, 0\n v_mov_b32 v{pm+2}, 0\n v_cvt_pk_bf16_f32 v{pm+3}, v{sm}, v{sm+1}")
    k(f"v_cvt_pk_bf16_f32 v{P0}, v{S00}, v{S00+1}\n v_cvt_pk_bf16_f32 v{P0+1}, v{S00+2}, v{S00+3}\n v_mov_b32 v{P0+2}, 0\n v_mov_b32 v{P0+3}, 0")
    for j in range(4):
        k(f"v_cvt_pk_bf16_f32 v{P1+j}, v{S10+2*j}, v{S10+2*j+1}")
    OA, SU = K, 208
    def oa(tq, w, t): return Q + ((tq*4 + w)*2 + t)*4
    for tq, pm in ((0, PM0), (1, PM1)):
        k(f"{MF16} {v(SU+4*tq,4)}, {v(ONES,2)}, {v(pm,2)}, 0")
    for tq, pm in ((0, PM0), (1, PM1)):
        for w in range(4):
            for t in range(2):
                k(f"{MF16} {v(oa(tq,w,t),4)}, {v(PB_+4*w+2,2)}, {v(pm+2*t,2)}, 0")
    for tq, p in ((0, P0), (1, P1)):
        k(f"{MF} {v(SU+4*tq,4)}, {v(ONES,4)}, {v(p,4)}, {v(SU+4*tq,4)}")
    for tq, p in ((0, P0), (1, P1)):
        for w in range(4):
            for t in range(2):
                k(f"{MF} {v(oa(tq,w,t),4)}, {v(V+(2*w+t)*4,4)}, {v(p,4)}, {v(oa(tq,w,t),4)}")
        if tq == 0:
            k(f"v_rcp_f32 v20, v{SU}\n v_rcp_f32 v22, v{SU+4}")
    for tq in range(2):
        for w in range(4):
            b = oa(tq, w, 0)
            for j in range(4):
                k(f"v_pk_mul_f32 {v(b+2*j,2)}, {v(b+2*j,2)}, {v(20+2*tq,2)} op_sel_hi:[1,0]")
            for j in range(4):
                k(f"v_cvt_pk_bf16_f32 v{b+j}, v{b+2*j}, v{b+2*j+1}")
            k(f"global_store_dwordx4 v{vL if tq == 0 else vO1}, {v(b,4)}, {s(sO,2)} offset:{w*1024-4096} sc1")
    k(f"s_add_u32 {s(sI)}, {s(sI)}, 1\n v_mov_b32 v20, {s(sI)}")
    add64(k, sKV, sKV, 0x200000); add64(k, sQ, sQ, 0x100000); add64(k, sPUB, sPUB, 0x80000); add64(k, sO, sO, 0x100000)
    k(f"""
    s_add_u32 {s(sN1)}, {s(sN1)}, 2
    s_add_u32 {s(sN2)}, {s(sN2)}, 4
    s_waitcnt vmcnt(0)
    s_mov_b64 exec, 1
    global_store_dword v{vF3}, v20, {s(sWS,2)} sc1
    s_mov_b64 exec, -1
    s_cmp_lt_u32 {s(sI)}, 16
    s_cbranch_scc1 {top}
    s_branch {exit_label}
    """)

def final_role(k, exit_label):
    sG = 36
    sWO, sWD, sX, sOUT, sRING, sS, sO, sH, sN, sT = 40, 42, 44, 46, 48, 49, 50, 52, 54, 56
    WO, WD = 256, 144
    k(f"""
    s_load_dwordx2 {s(sWO,2)}, s[0:1], {KA_WO}
    s_load_dwordx2 {s(sWD,2)}, s[0:1], {KA_WD}
    s_load_dwordx2 {s(sX,2)}, s[0:1], {KA_X}
    s_load_dwordx2 {s(sOUT,2)}, s[0:1], {KA_OUT}
    """)
    lane_ids(k)
    k(f"""
    s_lshl_b32 {s(sRING)}, {s(sW)}, 15
    s_and_b32 {s(sT)}, {s(sRK)}, 15
    s_lshl_b32 {s(sT)}, {s(sT)}, 6
    v_mov_b32 v6, {s(sT)}
    s_lshl_b32 {s(sT+1)}, {s(sW)}, 20
    s_mul_i32 {s(sT+2)}, {s(sW)}, {448*1024}
    s_waitcnt lgkmcnt(0)
    """)
    add64(k, sWO, sWO, s(sT+1)); add64(k, sWD, sWD, s(sT+2))
    pieces = [(sWD, c*65536, (lambda t, a_, c=c: WD + (t*14 + 2*c + a_)*4), "v") for c in range(7)]
    pieces += [(sWO, c*65536, (lambda t, a_, c=c: WO + (t*32 + 2*c + a_)*4), "v") for c in range(16)]
    load_weights(k, pieces, sRING, 1024)
    vL = 6
    vXO, vFH, vFO, vLW, vLR = 10, 11, 12, 13, 14
    XV, GT, ACC, FB = 16, 20, 28, 36
    NB = 27
    k(f"""
    v_lshlrev_b32 v{vLR}, 4, v1
    v_add_u32 v{vL}, 4096, v{vLR}
    v_add_u32 v{vL+1}, 8192, v{vL}
    v_add_u32 v{vL+2}, 8192, v{vL+1}
    v_add_u32 v{vL+3}, 8192, v{vL+2}
    s_lshl_b32 {s(sT+1)}, {s(sW)}, 11
    v_add_u32 v{vLW}, {s(sT+1)}, v{vLR}
    s_lshr_b32 {s(sT+1)}, {s(sRK)}, 4
    s_lshl_b32 {s(sT+2)}, {s(sT+1)}, 14
    s_add_u32 {s(sT+2)}, {s(sT+2)}, {s(sT)}
    s_lshl_b32 {s(sT+3)}, {s(sG)}, 15
    s_add_u32 {s(sT+2)}, {s(sT+2)}, {s(sT+3)}
    v_lshlrev_b32 v{vXO}, 10, v3
    v_lshl_add_u32 v{vXO}, v2, 4, v{vXO}
    v_add_u32 v{vXO}, {s(sT+2)}, v{vXO}
    s_lshl_b32 {s(sT+2)}, {s(sG)}, 1
    s_add_u32 {s(sT+2)}, {s(sT+2)}, {s(sT+1)}
    s_lshl_b32 {s(sT+3)}, {s(sT+2)}, 17
    s_lshl_b32 {s(sT+4)}, {s(sW)}, 15
    s_add_u32 {s(sT+3)}, {s(sT+3)}, {s(sT+4)}
    s_add_u32 {s(sT+3)}, {s(sT+3)}, {WS_O}
    """)
    add64(k, sO, sWS, s(sT+3))
    k(f"""
    s_lshl_b32 {s(sT+3)}, {s(sT+2)}, 16
    s_mul_i32 {s(sT+4)}, {s(sW)}, {14*1024}
    s_add_u32 {s(sT+3)}, {s(sT+3)}, {s(sT+4)}
    s_add_u32 {s(sT+3)}, {s(sT+3)}, {WS_H}
    """)
    add64(k, sH, sWS, s(sT+3))
    k(f"""
    v_min_u32 v{vFH}, 13, v3
    v_lshlrev_b32 v{vFH}, 2, v{vFH}
    s_mul_i32 {s(sT+4)}, {s(sW)}, 56
    s_add_u32 {s(sT+4)}, {s(sT+4)}, {WS_FLG + F_H}
    v_add_u32 v{vFH}, {s(sT+4)}, v{vFH}
    v_and_b32 v{vFO}, 7, v1
    v_lshlrev_b32 v{vFO}, 2, v{vFO}
    s_lshl_b32 {s(sT+4)}, {s(sW)}, 5
    s_add_u32 {s(sT+4)}, {s(sT+4)}, {WS_FLG + F_O}
    v_add_u32 v{vFO}, {s(sT+4)}, v{vFO}
    s_mov_b32 {s(sS)}, {s(sG)}
    s_barrier
    """)
    wait_ln(k, exit_label, 1)
    top = k.newlabel("Lfi")
    k(f"{top}:")
    def gemm(n, base, W):
        def ld(f): k(f"global_load_dwordx4 {v(FB+(f%NB)*4,4)}, v{vL+f//8}, {s(base,2)} offset:{(f%8)*1024-4096} sc1")
        for f in range(min(n, NB)): ld(f)
        for f in range(n):
            k(f"s_waitcnt vmcnt({min(n, f + NB) - 1 - f})")
            for t in range(2):
                k(f"{MF} {v(ACC+4*t,4)}, {r(W+(t*n+f)*4,4)}, {v(FB+(f%NB)*4,4)}, {'0' if f == 0 else v(ACC+4*t,4)}")
            if f + NB < n: ld(f + NB)
    def reduce(off, lab):
        k(f"""
        ds_write_b128 v{vLW}, {v(ACC,4)} offset:{off}
        ds_write_b128 v{vLW}, {v(ACC+4,4)} offset:{off+1024}
        s_waitcnt lgkmcnt(0)
        s_barrier
        s_cmp_lg_u32 {s(sW)}, 0
        s_cbranch_scc1 {lab}
        """)
        for w in range(1, 4):
            for t in range(2):
                k(f"ds_read_b128 {v(FB+(w-1)*8+4*t,4)}, v{vLR} offset:{off + w*2048 + t*1024}")
        for w in range(1, 4):
            k(f"s_waitcnt lgkmcnt({6-2*w})")
            for j in range(4):
                k(f"v_pk_add_f32 {v(ACC+2*j,2)}, {v(ACC+2*j,2)}, {v(FB+(w-1)*8+2*j,2)}")
    def rnd8(b):
        for j in range(4):
            k(f"v_cvt_pk_bf16_f32 v{b+2*j+1}, v{b+2*j}, v{b+2*j+1}")
            k(f"v_lshlrev_b32 v{b+2*j}, 16, v{b+2*j+1}\n v_and_b32 v{b+2*j+1}, 0xffff0000, v{b+2*j+1}")
    k(f"""
    s_and_b32 {s(sT)}, {s(sS)}, 1
    s_lshl_b32 {s(sT)}, {s(sT)}, 8
    v_add_u32 v2, {s(sT)}, v{vFH}
    s_lshr_b32 {s(sN)}, {s(sS)}, 1
    s_add_u32 {s(sN)}, {s(sN)}, 1
    global_load_dwordx4 {v(XV,4)}, v{vXO}, {s(sX,2)}
    """)
    poll_flags(k, 1, 2, sWS, sN, exit_label)
    gemm(14, sH, WD)
    l1, l2 = k.newlabel("Lf1"), k.newlabel("Lf2")
    reduce(0, l1)
    rnd8(ACC)
    for j in range(8): k(f"v_mul_f32 v{GT+j}, {fx(-LOG2E)}, v{ACC+j}")
    for j in range(8): k(f"v_exp_f32 v{GT+j}, v{GT+j}")
    for j in range(8): k(f"v_add_f32 v{GT+j}, 1.0, v{GT+j}")
    for j in range(8): k(f"v_rcp_f32 v{GT+j}, v{GT+j}")
    for j in range(8): k(f"v_mul_f32 v{GT+j}, v{GT+j}, v{ACC+j}")
    rnd8(GT)
    k(f"""
    {l1}:
    s_and_b32 {s(sT)}, {s(sS)}, 3
    s_lshl_b32 {s(sT)}, {s(sT)}, 7
    v_add_u32 v2, {s(sT)}, v{vFO}
    s_lshr_b32 {s(sN)}, {s(sS)}, 2
    s_add_u32 {s(sN)}, {s(sN)}, 1
    """)
    poll_flags(k, 1, 2, sWS, sN, exit_label)
    gemm(32, sO, WO)
    reduce(8192, l2)
    rnd8(ACC)
    for j in range(4): k(f"v_pk_mul_f32 {v(ACC+2*j,2)}, {v(ACC+2*j,2)}, {v(GT+2*j,2)}")
    rnd8(ACC)
    for j in range(4):
        k(f"v_lshlrev_b32 v{GT+2*j}, 16, v{XV+j}\n v_and_b32 v{GT+2*j+1}, 0xffff0000, v{XV+j}")
        k(f"v_pk_add_f32 {v(ACC+2*j,2)}, {v(ACC+2*j,2)}, {v(GT+2*j,2)}")
        k(f"v_cvt_pk_bf16_f32 v{FB+j}, v{ACC+2*j}, v{ACC+2*j+1}")
    k(f"global_store_dwordx4 v{vXO}, {v(FB,4)}, {s(sOUT,2)}")
    k(f"{l2}:")
    k(f"v_add_u32 v{vXO}, {3*32768}, v{vXO}")
    add64(k, sO, sO, 3*0x40000); add64(k, sH, sH, 3*0x20000)
    k(f"""
    s_add_u32 {s(sS)}, {s(sS)}, 3
    s_cmp_lt_u32 {s(sS)}, 64
    s_cbranch_scc1 {top}
    s_branch {exit_label}
    """)
```

```python
import sys
from asmgen import *
from layout import *
import heads as H
import roles as R
NAME = "recurrent_scan__memory_aug_recurrent_mem_tr__glu_gated_geglu__prompt_kernel"
HDR = open("recurrent_scan__memory_aug_recurrent_mem_tr__glu_gated_geglu__prompt.s.ref").read().split("; @launch")[0]

def gen(stamps=False, force_slow=False):
    k = Asm()
    if stamps: k("s_memrealtime s[76:77]\n s_memtime s[78:79]")
    k(f"""
    s_cmp_gt_u32 s2, 255
    s_cbranch_scc1 L_end
    s_load_dwordx2 s[4:5], s[0:1], {KA_WS}
    s_load_dwordx2 s[6:7], s[0:1], {KA_DBG}
    s_getreg_b32 s35, hwreg(HW_REG_XCC_ID)
    s_and_b32 s35, s35, 7
    v_lshrrev_b32 v2, 6, v0
    v_readfirstlane_b32 s9, v2
    s_lshr_b32 s8, s2, 3
    s_and_b32 s3, s2, 7
    s_mov_b32 s27, {R.BUDGET}
    s_waitcnt lgkmcnt(0)
    s_cmp_eq_u32 s3, 0
    s_cbranch_scc1 L_heads
    s_cmp_lt_u32 s3, 3
    s_cbranch_scc1 L_qkv
    s_cmp_eq_u32 s3, 3
    s_cbranch_scc1 L_attn
    s_cmp_eq_u32 s3, 4
    s_cbranch_scc1 L_ffn
    s_sub_u32 s36, s3, 5
    """)
    R.final_role(k, "L_fin")
    k(f"""
    L_qkv:
    s_sub_u32 s36, s3, 1
    s_lshl_b32 s36, s36, 5
    s_add_u32 s36, s36, s8
    """)
    R.stream_role(k, "qkv", "L_fin")
    k(f"""
    L_ffn:
    s_mov_b32 s36, s8
    s_cmp_gt_u32 s8, 27
    s_cbranch_scc1 L_fin
    """)
    R.stream_role(k, "ffn", "L_fin")
    k("L_attn:")
    R.ln_role(k)
    if stamps: k("s_memtime s[80:81]")
    R.attn_role(k, "L_fin")
    k("L_heads:")
    H.heads_prologue(k, "L_fin")
    stamp = None
    if stamps:
        k("s_memtime s[80:81]")
    if force_slow:
        k("s_branch L_slow")
    k(f"s_cmp_eq_u32 {s(H.sT)}, 0\n s_cbranch_scc1 L_slow")
    H.heads_loop(k, "", "L_fin", "L_fin", stamp)
    k("L_slow:")
    H.heads_loop(k, "sc1", "L_fin", "L_fin", stamp)
    k("L_fin:")
    if stamps:
        k(f"""
        s_mov_b64 exec, -1
        s_waitcnt vmcnt(0)
        s_memtime s[82:83]
        s_memrealtime s[84:85]
        s_waitcnt lgkmcnt(0)
        s_sub_u32 s82, s82, s78
        s_sub_u32 s80, s80, s78
        v_mov_b32 v4, s76
        v_mov_b32 v5, s84
        v_mov_b32 v6, s80
        v_mov_b32 v7, s82
        v_mov_b32 v8, s27
        v_mov_b32 v9, s35
        v_mov_b32 v10, 0
        v_mov_b32 v11, 0
        s_lshl_b32 s40, s2, 2
        s_add_u32 s40, s40, s9
        s_lshl_b32 s40, s40, 5
        s_add_u32 s40, s40, {WS_STAMP}
        v_mov_b32 v2, s40
        global_store_dwordx4 v2, v[4:7], s[4:5]
        global_store_dwordx4 v2, v[8:11], s[4:5] offset:16
        """)
    k("L_end:\n s_endpgm")
    return HDR + "; @launch grid=(256,1,1) block=(256,1,1) lds=163840\n" + kernel_text(NAME, k.finish())

if __name__ == "__main__":
    open("full.s", "w").write(gen())
    open("full_st.s", "w").write(gen(stamps=True))
```

```python
import re

TRANS = ("v_exp_f32", "v_log_f32", "v_rcp_f32", "v_rsq_f32", "v_sqrt_f32", "v_sin_f32", "v_cos_f32",
         "v_rcp_iflag_f32", "v_exp_f16", "v_rcp_f16")

def regs_of(tok):
    tok = tok.strip()
    neg = tok.lstrip("-|").rstrip("|")
    m = re.fullmatch(r"([vas])\[(\d+):(\d+)\]", neg)
    if m:
        return [(m.group(1), i) for i in range(int(m.group(2)), int(m.group(3)) + 1)]
    m = re.fullmatch(r"([vas])(\d+)", neg)
    if m:
        return [(m.group(1), int(m.group(2)))]
    if neg == "vcc":
        return [("s", "vcc_lo"), ("s", "vcc_hi")]
    if neg in ("vcc_lo", "vcc_hi", "m0"):
        return [("s", neg)]
    if neg == "exec":
        return [("s", "exec_lo"), ("s", "exec_hi")]
    if neg in ("exec_lo", "exec_hi"):
        return [("s", neg)]
    return []

def split_ops(s):
    out, depth, cur = [], 0, ""
    for ch in s:
        if ch in "[(":
            depth += 1
        if ch in "])":
            depth -= 1
        if ch == "," and depth == 0:
            out.append(cur.strip()); cur = ""
        else:
            cur += ch
    if cur.strip():
        out.append(cur.strip())
    return out

class Ins:
    __slots__ = ("text", "op", "cls", "defs", "uses", "ws", "label", "target", "uncond", "A", "C", "D", "passes",
                 "dpp", "perml", "rdlane", "wide", "dma", "trans", "lanesel", "opsel")
    def __init__(self, text):
        self.text = text
        self.label = None; self.target = None; self.uncond = False
        self.defs = set(); self.uses = set(); self.A = set(); self.C = (); self.D = (); self.passes = 0
        self.dpp = self.perml = self.rdlane = self.dma = self.trans = self.opsel = False
        self.wide = set(); self.lanesel = set()
        t = text.split(";")[0].strip()
        self.ws = 1
        if not t or t.startswith("."):
            self.cls = "none"; self.op = ""; self.ws = 0
            return
        if t.endswith(":"):
            self.cls = "label"; self.op = ""; self.label = t[:-1]; self.ws = 0
            return
        parts = t.split(None, 1)
        op = parts[0]; rest = parts[1] if len(parts) > 1 else ""
        self.op = op
        ops = split_ops(rest)
        mods = ""
        if ops:
            last = ops[-1].split(None, 1)
            if len(last) > 1 and not last[0].startswith("hwreg"):
                ops[-1] = last[0]; mods = last[1]
        R = [regs_of(o) for o in ops]
        def U(*idx):
            for i in idx:
                if i < len(R): self.uses.update(R[i])
        def Dd(*idx):
            for i in idx:
                if i < len(R): self.defs.update(R[i])
        base = re.sub(r"_(e32|e64|dpp|sdwa)$", "", op)
        if op.startswith("v_mfma") or op.startswith("v_smfmac"):
            self.cls = "mfma"
            self.passes = 8 if "32x32" in op else 4
            self.D = tuple(R[0]); Dd(0)
            if op.startswith("v_smfmac"):
                self.C = tuple(R[0]); self.A = set(R[1] + R[2] + R[3])
            else:
                self.C = tuple(R[3]); self.A = set(R[1] + R[2])
            self.uses = set(self.A) | set(self.C)
        elif op.startswith("v_"):
            self.cls = "valu"
            self.trans = base in TRANS
            self.dpp = op.endswith("_dpp") or "quad_perm" in mods or "row_" in mods or "wave_" in mods
            if op == "v_nop":
                pass
            elif base.startswith("v_cmpx"):
                raise ValueError("v_cmpx not supported")
            elif base.startswith("v_permlane") or base == "v_swap_b32":
                Dd(0, 1); U(0, 1); self.perml = base.startswith("v_permlane")
            elif base in ("v_readfirstlane_b32", "v_readlane_b32"):
                Dd(0); U(1, 2); self.rdlane = True
                if len(R) > 2: self.lanesel = set(R[2])
            elif base == "v_writelane_b32":
                Dd(0); U(0, 1, 2); self.lanesel = set(R[2])
            elif re.match(r"v_(add|sub|subrev|addc|subb|subbrev)_co_|v_div_scale|v_mad_u64_u32|v_mad_i64_i32", base):
                Dd(0, 1); U(*range(2, len(R)))
            else:
                Dd(0); U(*range(1, len(R)))
                if re.match(r"v_(fmac|mac|pk_fmac|dot\w*c_)", base) or self.dpp:
                    U(0)
                if base == "v_div_fmas_f32":
                    self.uses.update(regs_of("vcc"))
            if ("dst_sel:" in mods and "dst_sel:DWORD" not in mods):
                self.opsel = True; U(0)
        elif op.startswith("ds_"):
            self.cls = "ds"
            if op.startswith("ds_read") or op.startswith("ds_bpermute") or op.startswith("ds_permute") or op.startswith("ds_swizzle") or "_rtn_" in op:
                Dd(0); U(*range(1, len(R)))
            else:
                U(*range(len(R)))
        elif op.startswith("global_") or op.startswith("buffer_"):
            self.cls = "vmem"
            if op.startswith("global_load_lds") or (op.startswith("buffer_load") and re.search(r"\blds\b", mods)):
                U(*range(len(R))); self.dma = True
            elif "_load_" in op:
                Dd(0); U(*range(1, len(R)))
            elif "_store_" in op:
                U(*range(len(R)))
                if op.endswith("x4") or op.endswith("x3"):
                    self.wide = set(R[1] if op.startswith("global") else R[0])
            elif "_atomic_" in op:
                if op.startswith("global") and len(R) == 4:
                    Dd(0); U(1, 2, 3)
                else:
                    U(*range(len(R)))
                    if op.startswith("buffer") and re.search(r"\bsc0\b", mods): Dd(0)
            elif op in ("buffer_wbl2", "buffer_inv"):
                pass
            else:
                raise ValueError("unknown vmem " + text)
        elif op.startswith("s_"):
            self.cls = "salu"
            if op == "s_nop":
                self.ws = int(ops[0]) + 1
            elif op.startswith("s_cbranch") or op == "s_branch":
                self.target = ops[0]; self.uncond = op == "s_branch"
            elif op == "s_endpgm":
                self.uncond = True
            elif op.startswith("s_cmp") or op.startswith("s_bitcmp") or op in ("s_waitcnt", "s_barrier", "s_setprio"):
                U(*range(len(R)))
            else:
                Dd(0); U(*range(1, len(R)))
                if "saveexec" in op:
                    self.defs.update(regs_of("exec"))
        else:
            raise ValueError("unknown instruction " + text)

def isv(r): return r[0] in "va"

def need(p, c):
    n = 0
    if p.cls == "valu":
        vd = {r for r in p.defs if isv(r)}
        sd = {r for r in p.defs if not isv(r)}
        if vd:
            if c.cls == "mfma" and vd & c.uses: n = max(n, 2)
            if c.cls == "valu" and vd & c.uses:
                if c.dpp or c.perml: n = max(n, 2)
                if c.rdlane: n = max(n, 1)
                if p.trans and not c.trans: n = max(n, 1)
                if p.opsel: n = max(n, 1)
            if p.trans and c.cls in ("ds", "vmem") and vd & c.uses: n = max(n, 1)
        if sd:
            if c.cls == "valu" and sd & c.uses: n = max(n, 4 if (sd & c.lanesel or c.op.startswith("v_div_fmas")) else 2)
            if c.cls == "vmem" and sd & c.uses: n = max(n, 5)
    elif p.cls == "mfma":
        D = set(p.D)
        if c.cls == "mfma":
            if D & c.A: n = max(n, p.passes + 4)
            if D & set(c.C):
                if c.C == p.D and c.op == p.op: pass
                else: n = max(n, p.passes + 2)
            elif D & set(c.D):
                n = max(n, 0 if c.op == p.op else p.passes + 4)
        elif c.cls in ("valu", "ds", "vmem"):
            if D & (c.uses | c.defs): n = max(n, p.passes + 4)
            if c.cls == "valu" and set(p.C) & c.defs: n = max(n, p.passes - 1)
    elif p.cls == "salu":
        if ("s", "m0") in p.defs and c.dma: n = max(n, 1)
    elif p.cls == "vmem":
        if p.wide and p.wide & c.defs: n = max(n, 2 if c.cls in ("valu", "mfma") else 1)
    return n

MAXW = 12

def elapsed(p, path, c):
    t, last, lastp = 1, 0, p.passes
    for x in reversed(path):
        if isinstance(x, int):
            t += x
        else:
            if x.cls == "mfma":
                t = max(t, last + lastp); last, lastp = t, x.passes
            t += x.ws
    return t, (last + lastp if c.cls == "mfma" else 0)

def fix_hazards(lines):
    ins = [Ins(l) for l in lines]
    branches = {}
    for x in ins:
        if x.target: branches.setdefault(x.target, []).append(x)
    out = []
    seq = list(ins)
    idx = {id(x): i for i, x in enumerate(seq)}
    extra = [0] * len(seq)
    def search(c, i, dist, seen, path):
        best = 0
        j = i
        path = list(path)
        while True:
            if (j != idx[id(c)] or dist > 0) and extra[j]:
                dist += extra[j]; path.append(extra[j])
            x = seq[j]
            if x.label is not None:
                for b in branches.get(x.label, []):
                    bi = idx[id(b)]
                    key = (bi, dist)
                    if key not in seen and dist + 1 < MAXW:
                        seen.add(key)
                        best = max(best, search(c, bi, dist + b.ws, seen, path + [b]))
            j -= 1
            if j < 0: break
            p = seq[j]
            if p.uncond: break
            if p.ws:
                r = need(p, c)
                if r > dist:
                    if p.cls == "mfma":
                        tf, ts = elapsed(p, path, c)
                        short = 0 if ts >= r + 1 else r + 1 - tf
                    else:
                        short = r - dist
                    if short > best: best = short
                dist += p.ws
                path.append(p)
            if dist >= MAXW: break
        return best
    total = 0
    for i, c in enumerate(seq):
        if c.cls in ("valu", "mfma", "ds", "vmem"):
            n = search(c, i, 0, set(), [])
            if n > 0:
                extra[i] = n; total += n
    for i, c in enumerate(seq):
        if extra[i]:
            out.append(f"    s_nop {extra[i]-1}")
        out.append(c.text)
    return out, total

class Asm:
    def __init__(self):
        self.lines = []
        self.nlab = 0
    def __call__(self, text):
        for l in text.split("\n"):
            l = l.strip()
            if not l: continue
            if l.endswith(":") or l.startswith("."):
                self.lines.append(l)
            else:
                self.lines.append("    " + l)
    def newlabel(self, stem="L"):
        self.nlab += 1
        return f"{stem}_{self.nlab}"
    def label(self, name):
        self.lines.append(name + ":")
    def finish(self):
        out, total = fix_hazards(self.lines)
        return "\n".join(out) + "\n"

def v(a, n=1): return f"v{a}" if n == 1 else f"v[{a}:{a+n-1}]"
def a(x, n=1): return f"a{x}" if n == 1 else f"a[{x}:{x+n-1}]"
def s(x, n=1): return f"s{x}" if n == 1 else f"s[{x}:{x+n-1}]"
def r(x, n=1):
    return v(x, n) if x < 256 else a(x - 256, n)

def kernel_text(name, body, nptr=14, vgpr=512, accum=256, first=True):
    t = ""
    if first:
        t += '.amdgcn_target "amdgcn-amd-amdhsa--gfx950"\n'
    t += f""".text
.globl {name}
.p2align 8
.type {name},@function
{name}:
{body}
.section .rodata,"a"
.p2align 6
.amdhsa_kernel {name}
  .amdhsa_next_free_vgpr {vgpr}
  .amdhsa_next_free_sgpr 102
  .amdhsa_accum_offset {accum}
  .amdhsa_group_segment_fixed_size 0
  .amdhsa_kernarg_size {nptr*8}
  .amdhsa_user_sgpr_count 2
  .amdhsa_user_sgpr_kernarg_segment_ptr 1
  .amdhsa_system_sgpr_workgroup_id_x 1
.end_amdhsa_kernel
"""
    return t

if __name__ == "__main__":
    k = Asm()
    k("""
    v_mov_b32 v1, 0
    v_mfma_f32_16x16x32_bf16 v[4:7], v[0:3], v[8:11], 0
    L1:
    v_add_f32 v20, v4, v5
    v_cmp_eq_u32 vcc, v1, v2
    v_cndmask_b32 v3, v1, v2, vcc
    v_mov_b32_dpp v9, v3 quad_perm:[2,3,0,1] row_mask:0xf bank_mask:0xf
    v_mfma_f32_16x16x32_bf16 v[4:7], v[0:3], v[8:11], v[4:7]
    s_cbranch_scc1 L1
    s_endpgm
    """)
    print(k.finish())
```

```python
from asmgen import *
from layout import *
import math

L_MS, L_O, L_T, L_SX, L_WO, L_WSTR, L_KV = 0, 0, 8192, 12288, 16384, 36864, 32768
SEL, ONES, PMZ, FLAG, IDX, vM, vPst, vMst, vTw, vTr, vTo, vSr, vWo, NEGC, vMw = 104, 108, 112, 116, 117, 118, 119, 120, 121, 122, 123, 124, 125, 126, 127
A0, WB, KX, DQ, DK, DV, VX, X0, PUBR = 0, 32, 56, 64, 72, 80, 88, 96, 100
SENT = 99
WQ, WK, WV = 256, 384, 128
sWS, sDBG, sH, sW = 4, 6, 8, 9
sM, sPst, sPld, sKV, sPUB = (10, 12), (14, 16), (18, 20), 22, 24
sSTEP, sBUD, sC, sM16, sJ = 26, 27, 28, 30, 32
sFK, sFP = 36, 38
sT = 40
CEXP = (128 ** -0.5) * math.log2(math.e)
def f2u(x):
    import struct
    return struct.unpack("<I", struct.pack("<f", x))[0]

def wfrag(base, t, c): return r(base + (t * 8 + c) * 8, 8)
SM = "v_smfmac_f32_16x16x64_bf16"
MF = "v_mfma_f32_16x16x32_bf16"
MF16 = "v_mfma_f32_16x16x16_bf16"
DPPM = "row_mask:0xf bank_mask:0xf"

def add64(k, dst, src, off):
    k(f"s_add_u32 {s(dst)}, {s(src)}, {off}\n s_addc_u32 {s(dst+1)}, {s(src+1)}, 0")

def heads_prologue(k, exit_label):
    k(f"""
    s_load_dwordx2 {s(sT,2)}, s[0:1], {KA_MEM0}
    s_load_dwordx4 {s(sT+4,4)}, s[0:1], {KA_WQ}
    s_load_dwordx4 {s(sT+8,4)}, s[0:1], {KA_WV}
    v_and_b32 v1, 63, v0                 ; lane
    v_lshrrev_b32 v2, 4, v1              ; g
    v_and_b32 v3, 15, v1                 ; n
    v_lshrrev_b32 v4, 2, v3              ; n/4
    v_and_b32 v5, 3, v1                  ; n%4
    v_lshlrev_b32 {v(vM)}, 4, v1
    ; weight DMA source offset (QKV): ((l/4)%4*4 + l/16)*8192 + (l%4)*16 + h*256 + w*64
    v_lshlrev_b32 v6, 2, v4
    v_add_u32 v6, v6, v2
    v_lshlrev_b32 v6, 13, v6
    v_lshl_add_u32 v6, v5, 4, v6
    s_lshl_b32 {s(sT+12)}, {s(sH)}, 8
    s_lshl_b32 {s(sT+13)}, {s(sW)}, 6
    s_add_u32 {s(sT+12)}, {s(sT+12)}, {s(sT+13)}
    s_lshl_b32 {s(sT+13)}, {s(sW)}, 19
    s_add_u32 {s(sT+12)}, {s(sT+12)}, {s(sT+13)}
    v_add_u32 v6, {s(sT+12)}, v6
    ; Wo source offset: h*131072 + (l/8)*1024 + (l%8)*16 + w*128
    v_lshrrev_b32 v7, 3, v1
    v_lshlrev_b32 v7, 10, v7
    v_and_b32 v8, 7, v1
    v_lshl_add_u32 v7, v8, 4, v7
    s_lshl_b32 {s(sT+12)}, {s(sH)}, 17
    s_mul_i32 {s(sT+13)}, {s(sW)}, {128 + 32768}
    s_add_u32 {s(sT+12)}, {s(sT+12)}, {s(sT+13)}
    v_add_u32 v7, {s(sT+12)}, v7
    s_mul_i32 {s(sT+14)}, {s(sW)}, {L_WSTR}
    s_add_u32 {s(sT+14)}, {s(sT+14)}, {L_WO}
    v_add_u32 {v(vWo)}, {s(sT+14)}, {v(vM)}
    """)
    sRING = sT + 14
    k(f"""
    s_and_b32 {s(sT+15)}, {s(sW)}, 1
    s_lshl_b32 {s(sT+15)}, {s(sT+15)}, 2
    s_lshr_b32 {s(sT+16)}, {s(sH)}, 3
    s_add_u32 {s(sT+15)}, {s(sT+15)}, {s(sT+16)}   ; c_o
    s_lshr_b32 {s(sT+16)}, {s(sH)}, 1
    s_and_b32 {s(sT+16)}, {s(sT+16)}, 3            ; a_o
    s_and_b32 {s(sT+17)}, {s(sH)}, 1
    s_lshl_b32 {s(sT+17)}, {s(sT+17)}, 1
    s_lshr_b32 {s(sT+18)}, {s(sW)}, 1
    s_add_u32 {s(sT+17)}, {s(sT+17)}, {s(sT+18)}   ; g_o
    s_lshl_b32 {s(sT+18)}, {s(sT+15)}, 10
    s_lshl_b32 {s(sT+19)}, {s(sT+16)}, 8
    s_add_u32 {s(sT+18)}, {s(sT+18)}, {s(sT+19)}
    s_lshl_b32 {s(sT+19)}, {s(sT+17)}, 6
    s_add_u32 {s(sT+18)}, {s(sT+18)}, {s(sT+19)}
    v_lshlrev_b32 v9, 4, v2
    v_lshl_add_u32 v9, v5, 2, v9
    v_add_u32 {v(vMst)}, {s(sT+18)}, v9
    s_lshl_b32 {s(sT+18)}, {s(sT+17)}, 11
    s_lshl_b32 {s(sT+19)}, {s(sT+15)}, 7
    s_add_u32 {s(sT+18)}, {s(sT+18)}, {s(sT+19)}
    s_lshl_b32 {s(sT+19)}, {s(sT+16)}, 5
    s_add_u32 {s(sT+18)}, {s(sT+18)}, {s(sT+19)}
    v_and_b32 v9, 1, v2
    v_lshlrev_b32 v9, 10, v9
    v_lshrrev_b32 v10, 1, v2
    v_lshl_add_u32 v9, v10, 4, v9
    v_lshl_add_u32 v9, v5, 1, v9
    v_add_u32 v9, {s(sT+18)}, v9
    v_lshl_add_u32 v10, v4, 2, v2
    v_lshlrev_b32 v10, 12, v10
    v_lshl_add_u32 v10, v5, 4, v10
    s_lshl_b32 {s(sT+18)}, {s(sW)}, 16
    s_lshl_b32 {s(sT+19)}, {s(sH)}, 6
    s_add_u32 {s(sT+18)}, {s(sT+18)}, {s(sT+19)}
    v_add_u32 {v(vPst)}, {s(sT+18)}, v10
    """)
    add64(k, sM[0], sWS, WS_M + 4096)
    add64(k, sM[1], sWS, WS_M + 8192 + 4096)
    add64(k, sPst[0], sWS, WS_P)
    add64(k, sPst[1], sWS, WS_P + 262144)
    k(f"""
    s_lshl_b32 {s(sT+18)}, {s(sH)}, 2
    s_add_u32 {s(sT+18)}, {s(sT+18)}, {s(sW)}
    s_lshl_b32 {s(sT+19)}, {s(sT+18)}, 11
    """)
    add64(k, sPld[0], sPst[0], s(sT+19))
    add64(k, sPld[1], sPst[1], s(sT+19))
    k(f"s_lshl_b32 {s(sT+19)}, {s(sT+18)}, 10")
    add64(k, sPUB, sWS, WS_PUB)
    add64(k, sPUB, sPUB, s(sT+19))
    k(f"s_lshl_b32 {s(sT+19)}, {s(sT+18)}, 12")
    add64(k, sKV, sWS, WS_KV)
    add64(k, sKV, sKV, s(sT+19))
    k(f"""
    s_mov_b32 {s(sC)}, {hex(f2u(CEXP))}
    s_mov_b32 {s(sC+1)}, {hex(f2u(CEXP))}
    s_lshl_b32 {s(sT+19)}, {s(sW)}, 10
    s_xor_b32 {s(sJ)}, {s(sT+19)}, 1024
    s_xor_b32 {s(sJ+1)}, {s(sT+19)}, 2048
    s_xor_b32 {s(sJ+2)}, {s(sT+19)}, 3072
    v_add_u32 {v(vMw)}, {s(sT+19)}, {v(vM)}
    v_mov_b32 {v(SENT)}, -1
    s_waitcnt lgkmcnt(0)
    global_load_ushort v11, v9, {s(sT,2)}
    global_load_ushort v12, v9, {s(sT,2)} offset:8
    global_store_dword {v(vM)}, {v(SENT)}, {s(sPld[0],2)} sc1
    global_store_dword {v(vM)}, {v(SENT)}, {s(sPld[0],2)} offset:1024 sc1
    global_store_dword {v(vM)}, {v(SENT)}, {s(sPld[1],2)} sc1
    global_store_dword {v(vM)}, {v(SENT)}, {s(sPld[1],2)} offset:1024 sc1
    global_store_dword {v(vMst)}, {v(SENT)}, {s(sM[1],2)} offset:-4096 sc1
    """)
    pieces = []
    for m in "qkv":
        pieces += [(m, c) for c in (0, 2, 4, 6, 1, 3, 5, 7)]
    for st in range(2):
        for kq in range(4):
            pieces.append(("o", st * 4 + kq))
    base_of = {"q": sT + 4, "k": sT + 6, "v": sT + 8, "o": sT + 10}
    def dma(p):
        kind, c = pieces[p]
        slot = p % 8
        for u in range(4):
            k(f"s_add_u32 m0, {s(sRING)}, {slot*4096 + u*1024}")
            if kind == "o":
                off = (c % 4) * 32768 + u * 8192 + (c // 4) * 512
                k(f"v_xor_b32 v13, {off}, v7")
            else:
                k(f"v_xor_b32 v13, {((c//2) << 19) | ((c%2) << 21) | (u << 17)}, v6")
            k(f"global_load_lds_dwordx4 v13, {s(base_of[kind],2)}")
    for p in range(8):
        dma(p)
    k(f"""
    s_waitcnt vmcnt(37)
    v_lshl_or_b32 v11, v12, 16, v11
    global_store_dword {v(vMst)}, v11, {s(sM[0],2)} offset:-4096 sc1
    """)
    k(f"""
    ; IDX: half = (n/2)%2
    v_and_b32 v14, 2, v1
    v_cmp_eq_u32 vcc, 0, v14
    v_mov_b32 v15, 0xeeee
    v_mov_b32 v16, 0x4444
    v_cndmask_b32 {v(IDX)}, v15, v16, vcc
    ; SEL: lane (g,m): one-hot j = 2*(m/4) + m%4 for m%4 < 2 -> dword m/4 holds 1.0 in half m%4
    v_mov_b32 v15, 0x3f80
    v_lshlrev_b32 v16, 4, v5
    v_lshlrev_b32 v15, v16, v15
    v_cmp_gt_u32 vcc, 2, v5
    v_cndmask_b32 v15, 0, v15, vcc
    """)
    for j in range(4):
        k(f"v_cmp_eq_u32 vcc, {j}, v4\n v_cndmask_b32 {v(SEL+j)}, 0, v15, vcc")
    for j in range(4):
        k(f"v_mov_b32 {v(ONES+j)}, 0x3f803f80")
    k(f"""
    v_mov_b32 {v(PMZ+1)}, 0
    v_mov_b32 {v(PMZ+2)}, 0
    v_mov_b32 {v(NEGC)}, {hex(f2u(-CEXP))}
    ; T write: n*32 + (g ^ n/4)*8 + w*1024 + L_T
    v_xor_b32 v15, v2, v4
    v_lshlrev_b32 v15, 3, v15
    v_lshl_add_u32 v15, v3, 5, v15
    s_lshl_b32 {s(sT+19)}, {s(sW)}, 10
    s_add_u32 {s(sT+19)}, {s(sT+19)}, {L_T}
    v_add_u32 {v(vTw)}, {s(sT+19)}, v15
    ; T read: (4g + r)*32 + (c' ^ g)*8 , r = n/4, c' = n%4
    v_xor_b32 v15, v5, v2
    v_lshlrev_b32 v15, 3, v15
    v_lshl_add_u32 v16, v2, 2, v4
    v_lshl_add_u32 {v(vTr)}, v16, 5, v15
    s_and_b32 {s(sT+19)}, {s(sW)}, 1
    s_lshl_b32 {s(sT+19)}, {s(sT+19)}, 11
    v_add_u32 {v(vTo)}, {s(sT+19)}, {v(vTr)}
    ; partial score read: lanes n%4>=2 take key tile 0 at their own slot, the others key tile 1 at lane+2
    v_xor_b32 v15, 2, v14
    v_mul_u32_u24 v15, {(2048 + 32) // 2}, v15
    v_add_u32 {v(vSr)}, v15, {v(vM)}
    ; v17: Wq/Wk natural cols: (8g + r)*64 + c'*8 ; v18: Wv: (8g+r)*64 + c'*16 ; v19: Wo: (4g + r%2)*128 + c'*32 + (r/2)*8
    v_lshl_add_u32 v15, v2, 3, v4
    v_lshlrev_b32 v15, 6, v15
    v_add_u32 v15, {s(sRING)}, v15
    v_lshl_add_u32 v17, v5, 3, v15
    v_lshl_add_u32 v18, v5, 4, v15
    v_and_b32 v15, 1, v4
    v_lshl_add_u32 v15, v2, 2, v15
    v_lshlrev_b32 v15, 7, v15
    v_lshl_add_u32 v15, v5, 5, v15
    v_lshrrev_b32 v16, 1, v4
    v_lshl_add_u32 v15, v16, 3, v15
    v_add_u32 v19, {s(sRING)}, v15
    """)
    extra = 1
    for p in range(32):
        kind, c = pieces[p]
        slot = p % 8
        later = min(7, 31 - p) * 4
        if p < 8: later += 1
        if 8 < p < 16: later += 1
        k(f"s_waitcnt vmcnt({later})")
        if p == 8:
            k(f"""
            s_lshl_b32 {s(sT+19)}, s35, 3
            s_lshl_b64 {s(sT+16,2)}, 1, {s(sT+19)}
            v_mov_b32 v20, {s(sT+16)}
            v_mov_b32 v21, {s(sT+17)}
            v_mov_b32 v22, {DBG_HBAR*4}
            s_mov_b64 exec, 1
            global_atomic_add_x2 v22, v[20:21], {s(sDBG,2)} sc1
            s_mov_b64 exec, -1
            """)
        for t in range(2):
            for jq in range(4):
                if kind == "o":
                    dst = 24 + t * 8 + jq * 2
                    k(f"ds_read_b64_tr_b16 {v(dst,2)}, v19 offset:{slot*4096 + (2*(jq%2) + 16*(jq//2))*128 + t*16}")
                else:
                    base = {"q": WQ, "k": WK, "v": WV}[kind]
                    dst = base + (t * 8 + c) * 8 + jq * 2
                    toff = t * 8 if kind == "v" else t * 32
                    ar = 18 if kind == "v" else 17
                    k(f"ds_read_b64_tr_b16 {r(dst,2)}, v{ar} offset:{slot*4096 + (4*(jq%2) + 32*(jq//2))*64 + toff}")
        k("s_waitcnt lgkmcnt(0)")
        if kind == "o":
            for q in range(4):
                k(f"ds_write_b128 {v(vWo)}, {v(24+4*q,4)} offset:{slot*4096 + q*1024}")
            k("s_waitcnt lgkmcnt(0)")
        if p + 8 < 32:
            dma(p + 8)
    from roles import wait_ln
    wait_ln(k, exit_label, 20)
    k(f"""
    s_lshl_b32 {s(sT+19)}, {s(sH)}, 7
    s_lshl_b32 {s(sT+18)}, {s(sW)}, 2
    s_add_u32 {s(sT+19)}, {s(sT+19)}, {s(sT+18)}
    s_add_u32 {s(sT+18)}, {s(sT+19)}, {WS_FLG + F_KV}
    """)
    add64(k, sFK, sWS, s(sT+18))
    add64(k, sFP, sFK, F_PUB - F_KV)
    lw = k.newlabel("Lkv")
    k(f"""
    {lw}:
    global_load_dword {v(FLAG)}, {v(PMZ+1)}, {s(sFK,2)} sc1
    s_sub_u32 {s(sBUD)}, {s(sBUD)}, 1
    s_cbranch_scc1 {exit_label}
    s_waitcnt vmcnt(0)
    v_cmp_eq_u32 vcc, 0, {v(FLAG)}
    s_cbranch_vccnz {lw}
    s_add_u32 m0, {s(sRING)}, {L_KV}
    global_load_dword {v(FLAG)}, {v(PMZ+1)}, {s(sFK,2)} offset:16 sc1
    """)
    for u in range(4):
        k(f"global_load_lds_dwordx4 {v(vM)}, {s(sKV,2)} offset:{u*1024} sc1")
    shadow1(k)
    add64(k, sKV, sKV, 0x80000)
    lw = k.newlabel("Lhb")
    k(f"""
    v_mov_b32 v22, {DBG_HBAR*4}
    {lw}:
    global_load_dwordx2 v[20:21], v22, {s(sDBG,2)} sc1
    s_sub_u32 {s(sBUD)}, {s(sBUD)}, 1
    s_cbranch_scc1 {exit_label}
    s_waitcnt vmcnt(0)
    v_sad_u8 v23, v20, 0, 0
    v_sad_u8 v23, v21, 0, v23
    v_cmp_gt_u32 vcc, 128, v23
    s_cbranch_vccnz {lw}
    v_readfirstlane_b32 {s(sT)}, v20
    v_readfirstlane_b32 {s(sT+1)}, v21
    s_mov_b32 {s(sSTEP)}, 0
    s_or_b32 {s(sT)}, {s(sT)}, {s(sT+1)}
    s_and_b32 {s(sT)}, {s(sT)}, 0x80808080
    """)


def wo_tile(f):
    return (f, 0) if f < 4 else ((f - 4) // 3, 1 + (f - 4) % 3)
def wo_off(f):
    tile, j = wo_tile(f)
    return ((tile // 2) * 4 + j) * 4096 + (tile % 2) * 2048

class LQ:
    def __init__(self, k): self.k = k; self.p = []
    def __call__(self, tag, text):
        self.k(text); self.p.append(tag)
    def need(self, *tags):
        idx = [i for i, t in enumerate(self.p) if t in tags]
        if not idx: return
        n = min(len(self.p) - 1 - idx[-1], 15)
        self.p = self.p[len(self.p) - n:] if n else []
        self.k(f"s_waitcnt lgkmcnt({n})")

class Cfg:
    b0 = 8
CFG = Cfg()

def shadow1(k):
    for f in range(3):
        for hh in range(2):
            k(f"ds_read_b128 {v(WB+8*f+4*hh,4)}, {v(vWo)} offset:{wo_off(f) + hh*1024}")
    for j in range(12):
        k(f"v_mov_b64 {v(DQ+2*j,2)}, 0")

MAT = {"q": (DQ, WQ), "k": (DK, WK), "v": (DV, WV)}
def prod(m, c, t, areg=None):
    d, wb = MAT[m]
    return f"{SM} {v(d+4*t,4)}, {v(A0+4*c if areg is None else areg,4)}, {wfrag(wb,t,c)}, {v(IDX)}"

def arrive(k, par, exit_label, cold, last, st):
    SETB = 24
    def poll2(kk, b):
        kk(f"global_load_dwordx4 {v(b,4)}, {v(vMw)}, {s(sM[par],2)} offset:-4096 sc1")
        kk(f"global_load_dwordx4 {v(b+4,4)}, {v(vMw)}, {s(sM[par],2)} sc1")
    if not last:
        for u in range(4):
            k(f"ds_read_b128 {v((KX, KX+4, VX, VX+4)[u],4)}, {v(vWo)} offset:{L_KV + u*1024}")
        lf, lr = k.newlabel("Lkf"), k.newlabel("Lkr")
        k(f"""
        s_add_u32 {s(sT)}, {s(sSTEP)}, 1
        s_lshr_b32 {s(sT)}, {s(sT)}, 1
        s_min_u32 {s(sT)}, {s(sT)}, 31
        v_cmp_ge_u32 vcc, {s(sT)}, {v(FLAG)}
        s_cbranch_vccnz {lf}
        {lr}:
        """)
        cold(f"""
        {lf}:
        global_load_dword {v(FLAG)}, {v(PMZ+1)}, {s(sFK,2)} offset:{16*(1-par)} sc1
        s_sub_u32 {s(sBUD)}, {s(sBUD)}, 1
        s_cbranch_scc1 {exit_label}
        s_waitcnt vmcnt(0)
        v_cmp_ge_u32 vcc, {s(sT)}, {v(FLAG)}
        s_cbranch_vccnz {lf}
        s_branch {lr}
        """)
    poll2(k, A0)
    for j in range(3):
        k(f"v_or_b32 {v(X0+j)}, {s(sJ+j)}, {v(vM)}")
    poll2(k, SETB)
    m0 = "k" if last else "q"
    own = [(m, c, t) for m in (("k", "v") if last else ("q", "k", "v")) for t in range(2) for c in range(2)]
    la, lb, fa, fb, lj = (k.newlabel(x) for x in ("Lqa", "Lqb", "Lfa", "Lfb", "Lqj"))
    nb0 = min(CFG.b0, len(own) - 3)
    def body(kk, b, fail):
        L = LQ(kk)
        P = [prod(m, c, t, b + 4*c) for (m, c, t) in own]
        kk("s_waitcnt vmcnt(2)")
        kk(P[0])
        L("w", f"ds_write_b128 {v(vMw)}, {v(b,4)} offset:{L_MS}")
        kk(f"v_max_u32 {v(X0+3)}, {v(b)}, {v(b+4)}")
        kk(P[1])
        L("w", f"ds_write_b128 {v(vMw)}, {v(b+4,4)} offset:{L_MS+4096}")
        kk(f"v_cmp_eq_u32 vcc, -1, {v(X0+3)}")
        kk(P[2])
        kk(f"s_cbranch_vccnz {fail}")
        rd = 2
        for i in range(3, len(P)):
            kk(P[i])
            if i + 1 == nb0:
                kk("s_waitcnt lgkmcnt(0)"); L.p = []
                st(kk, 0)
                kk("s_barrier")
            elif i + 1 > nb0 and rd < 6:
                L(f"m{rd}", f"ds_read_b128 {v(A0+4*rd,4)}, {v(X0+rd//2-1)} offset:{L_MS + (rd%2)*4096}"); rd += 1
            if i == 4: kk(f"v_mov_b32 {v(SENT)}, -1")
            if i == 5: kk(f"v_mov_b32 {v(PUBR)}, {s(sSTEP)}")
        return L, rd
    k(f"{la}:")
    L, rd = body(k, A0, fa)
    k(f"{lj}:")
    d0 = MAT[m0][0]
    cold(f"{fa}:")
    poll2(cold, A0)
    for j in range(4): cold(f"v_mov_b64 {v(d0+2*j,2)}, 0")
    cold(f"{lb}:")
    body(cold, SETB, fb)
    cold(f"s_branch {lj}\n {fb}:")
    poll2(cold, SETB)
    cold(f"s_sub_u32 {s(sBUD)}, {s(sBUD)}, 1\n s_cbranch_scc1 {exit_label}")
    for j in range(4): cold(f"v_mov_b64 {v(d0+2*j,2)}, 0")
    cold(f"s_branch {la}")
    def mread():
        nonlocal rd
        if rd < 8:
            if rd == 6: k("s_waitcnt vmcnt(0)")
            L(f"m{rd}", f"ds_read_b128 {v(A0+4*rd,4)}, {v(X0+rd//2-1)} offset:{L_MS + (rd%2)*4096}"); rd += 1
            return True
        return False
    return L, mread

def pack(d, dst):
    return [f"v_add_f32 {v(d)}, {v(d)}, {v(d+2)}", f"v_add_f32 {v(d+1)}, {v(d+1)}, {v(d+3)}",
            f"v_cvt_pk_bf16_f32 {v(dst)}, {v(d)}, {v(d+1)}"]

def heads_last(k, exit_label, done_label, cold, st):
    L, mread = arrive(k, 1, exit_label, cold, True, st)
    fill = []
    n = 0
    for m in "kv":
        for t in range(2):
            for c in range(2, 8):
                L.need(f"m{c}")
                k(prod(m, c, t))
                if not mread():
                    if n == 0: k(f"global_store_dword {v(PMZ+1)}, {v(PUBR)}, {s(sFP,2)} sc1")
                    n += 1
                if c >= 4 and fill: k(fill.pop(0))
            fill = pack(MAT[m][0] + 4*t, PUBR + (2 if m == "v" else 0) + t)
    for f in fill: k(f)
    k(f"""global_store_dwordx4 {v(vM)}, {v(PUBR,4)}, {s(sPUB,2)} sc1
    v_mov_b32 {v(X0)}, 64
    s_waitcnt vmcnt(0)
    global_store_dword {v(PMZ+1)}, {v(X0)}, {s(sFP,2)} sc1
    s_branch {done_label}""")

def heads_step(k, par, sf, exit_label, cold, st):
    L, mread = arrive(k, par, exit_label, cold, False, st)
    dma = lambda u: f"global_load_lds_dwordx4 {v(vM)}, {s(sKV,2)} offset:{u*1024} sc1"
    vm = {15: dma(0), 17: f"global_store_dword {v(PMZ+1)}, {v(PUBR)}, {s(sFP,2)} sc1",
          19: dma(1), 21: f"global_load_dword {v(FLAG)}, {v(PMZ+1)}, {s(sFK,2)} offset:{16*par} sc1",
          24: dma(2), 25: f"global_store_dword {v(vM)}, {v(SENT)}, {s(sPld[1-par],2)} {sf}",
          28: dma(3), 30: f"global_store_dword {v(vM)}, {v(SENT)}, {s(sPld[1-par],2)} offset:1024 {sf}"}
    pq0, pq1, pk0, pk1 = pack(DQ, PUBR+2), pack(DQ+4, PUBR+3), pack(DK, PUBR), pack(DK+4, PUBR+1)
    FQ, SXD = 0, DQ
    n = 12
    for m in "qk":
        for t in range(2):
            for c in range(2, 8):
                n += 1
                if n == 36:
                    for i in range(2):
                        L.need(f"fq{i}")
                        k(f"{MF} {v(SXD,4)}, {v(KX+4*i,4)}, {v(FQ+4*i,4)}, {'0' if i == 0 else v(SXD,4)}")
                        if i == 0: L("w", f"ds_write_b32 {v(vTw)}, {v(PUBR)}")
                L.need(f"m{c}")
                k(prod(m, c, t))
                mread()
                if n in vm: k(vm[n])
                if n in (20, 21, 22): k(pq0[n-20])
                if n == 23: L("w", f"ds_write_b32 {v(vTw)}, {v(PUBR+2)} offset:4")
                if n == 26:
                    for x in pq1: k(x)
                if n == 27: L("w", f"ds_write_b32 {v(vTw)}, {v(PUBR+3)} offset:516")
                if n == 29: add64(k, sKV, sKV, 0x80000)
                if n == 31:
                    L.need("w"); k("s_barrier")
                if n in (32, 33):
                    for hh in range(2):
                        L(f"fq{n-32}", f"ds_read_b64_tr_b16 {v(FQ+4*(n-32)+2*hh,2)}, {v(vTo)} offset:{L_T + (n-32)*1024 + hh*512}")
                if n in (33, 34, 35): k(pk0[n-33])
    st(k, 1)
    vq = [(c, t) for c in range(2, 8) for t in range(2)]
    def V():
        c, t = vq.pop(0); k(prod("v", c, t))
    fbuf = {0: WB, 1: WB+8, 2: WB+16, 3: 8, 4: 0, 5: 16, 6: KX, 7: 24, 8: X0}
    def wo(f, hh):
        L(f"f{f}", f"ds_read_b128 {v(fbuf[f]+4*hh,4)}, {v(vWo)} offset:{wo_off(f) + hh*1024}")
    V()
    L("w", f"ds_write_b128 {v(vMw)}, {v(SXD,4)} offset:{L_SX}")
    for x in pk1: k(x)
    V()
    L("w", f"ds_write_b32 {v(vTw)}, {v(PUBR+1)} offset:512")
    V(); V(); wo(3, 0); V(); wo(3, 1); V()
    L.need("w"); k("s_barrier")
    FR = [0, 4, DK, DK+4]
    def fr(kk):
        for hh in range(2):
            L(f"F{kk}", f"ds_read_b64_tr_b16 {v(FR[kk]+2*hh,2)}, {v(vTr)} offset:{L_T + kk*1024 + hh*512}")
    SMD, U, MX, MA, MB, MC = X0, DQ, DQ+4, DQ+5, DQ+6, DQ+7
    V(); fr(0); V(); fr(1); V()
    for i in range(2): L("s", f"ds_read_b128 {v(KX+4*i,4)}, {v(vSr)} offset:{L_SX + i*1024}")
    V(); fr(2); V(); fr(3); V(); wo(5, 0)
    def sm(kk):
        L.need(f"F{kk}")
        k(f"{MF} {v(SMD,4)}, {v(FR[kk],4)}, {v(FR[kk],4)}, {'0' if kk == 0 else v(SMD,4)}")
    sm(0); wo(5, 1)
    sm(1); L.need("s")
    for i in range(2): k(f"v_add_f32 {v(U+i)}, {v(KX+i)}, {v(KX+4+i)}")
    sm(2)
    for i in range(2, 4): k(f"v_add_f32 {v(U+i)}, {v(KX+i)}, {v(KX+4+i)}")
    sm(3)
    k(f"v_max_f32 {v(MX)}, {v(U)}, {v(U+1)}")
    k(f"v_max3_f32 {v(MX)}, {v(MX)}, {v(U+2)}, {v(U+3)}")
    wo(4, 0); wo(4, 1)
    k(f"v_max_f32_dpp {v(MX)}, {v(MX)}, {v(MX)} quad_perm:[2,3,0,1] {DPPM}")
    st(k, 2)
    O0, O1, SU, PB, OP = DK, DK+4, DV, DV+4, DQ
    k(f"""
    v_max3_f32 {v(MA)}, {v(MX)}, {v(SMD)}, {v(SMD+1)}
    v_max3_f32 {v(MB)}, {v(MX)}, {v(SMD)}, {v(SMD+1)}
    v_pk_add_f32 {v(DV,2)}, {v(DV,2)}, {v(DV+2,2)}
    v_pk_add_f32 {v(DV+4,2)}, {v(DV+4,2)}, {v(DV+6,2)}
    v_permlane16_swap_b32 {v(MA)}, {v(MB)}
    v_max_f32 {v(MX)}, {v(MA)}, {v(MB)}
    v_max_f32 {v(MC)}, {v(MA)}, {v(MB)}
    v_cvt_pk_bf16_f32 {v(PUBR+2)}, {v(DV)}, {v(DV+1)}
    v_cvt_pk_bf16_f32 {v(PUBR+3)}, {v(DV+4)}, {v(DV+5)}
    v_permlane32_swap_b32 {v(MX)}, {v(MC)}
    v_max_f32 {v(MA)}, {v(MX)}, {v(MC)}
    """)
    wo(7, 0)
    k(f"""
    s_add_u32 {s(sSTEP)}, {s(sSTEP)}, 1
    v_mul_f32_dpp {v(MB)}, {v(MA)}, {v(NEGC)} quad_perm:[2,3,2,3] {DPPM}
    v_pk_fma_f32 {v(SMD,2)}, {v(SMD,2)}, {s(sC,2)}, {v(MB,2)} op_sel_hi:[1,1,0]
    v_pk_fma_f32 {v(U,2)}, {v(U,2)}, {s(sC,2)}, {v(MB,2)} op_sel_hi:[1,1,0]
    v_exp_f32 {v(SMD)}, {v(SMD)}
    v_exp_f32 {v(SMD+1)}, {v(SMD+1)}
    v_pk_fma_f32 {v(U+2,2)}, {v(U+2,2)}, {s(sC,2)}, {v(MB,2)} op_sel_hi:[1,1,0]
    v_cvt_pk_bf16_f32 {v(PMZ)}, {v(SMD)}, {v(SMD+1)}
    v_exp_f32 {v(U)}, {v(U)}
    v_exp_f32 {v(U+1)}, {v(U+1)}
    {MF16} {v(SU,4)}, {v(ONES,2)}, {v(PMZ,2)}, 0
    v_cvt_pk_bf16_f32 {v(PB)}, {v(U)}, {v(U+1)}
    v_exp_f32 {v(U+2)}, {v(U+2)}
    {MF16} {v(O0,4)}, {v(PUBR+2,2)}, {v(PMZ,2)}, 0
    v_cvt_pk_bf16_f32 {v(PMZ+3)}, {v(SMD)}, {v(SMD+1)}
    v_exp_f32 {v(U+3)}, {v(U+3)}
    v_mov_b32_dpp {v(PB+2)}, {v(PB)} quad_perm:[0,1,0,1] {DPPM}
    v_cvt_pk_bf16_f32 {v(PB+1)}, {v(U+2)}, {v(U+3)}
    {MF16} {v(O1,4)}, {v(PUBR+2,2)}, {v(PMZ+2,2)}, 0
    """)
    wo(7, 1)
    k(f"v_mov_b32_dpp {v(PB+3)}, {v(PB+1)} quad_perm:[0,1,0,1] {DPPM}")
    wo(6, 0)
    AW = {0: OP, 1: DQ+4, 2: VX, 3: VX+4}
    k(f"v_or3_b32 {v(AW[1])}, {v(vM)}, 32, {s(sJ)}")
    k(f"{MF} {v(SU,4)}, {v(ONES,4)}, {v(PB,4)}, {v(SU,4)}")
    k(f"global_store_dwordx4 {v(vM)}, {v(PUBR,4)}, {s(sPUB,2)} sc1")
    k(f"{MF} {v(O0,4)}, {v(VX,4)}, {v(PB,4)}, {v(O0,4)}")
    wo(6, 1)
    k(f"{MF} {v(O1,4)}, {v(VX+4,4)}, {v(PB,4)}, {v(O1,4)}")
    k(f"v_rcp_f32 {v(MB)}, {v(SU)}")
    wo(8, 0)
    for j in range(4):
        if j == 2: wo(8, 1)
        k(f"v_pk_mul_f32 {v(O0+2*j,2)}, {v(O0+2*j,2)}, {v(MB,2)} op_sel_hi:[1,0]")
        k(f"v_cvt_pk_bf16_f32 {v(OP+j)}, {v(O0+2*j)}, {v(O0+2*j+1)}")
    L("w", f"ds_write_b128 {v(vMw)}, {v(OP,4)} offset:{L_O}")
    st(k, 3)
    DW = DK
    for j in range(4):
        k(f"v_mov_b32_dpp {v(OP+j)}, {v(OP+j)} quad_perm:[2,3,2,3] {DPPM}")
    z = [f"v_mov_b64 {v(DW+2*j,2)}, 0" for j in range(8)]
    for j in range(4): k(z[j])
    for j in (2, 3): k(f"v_or3_b32 {v(AW[j])}, {v(vM)}, 32, {s(sJ+j-1)}")
    PS = fbuf[7]
    cv = lambda tile, rb: f"v_cvt_pk_bf16_f32 {v(PS+2*tile+rb)}, {v(DW+4*tile+rb)}, {v(DW+4*tile+rb+2)}"
    refill = []
    for f in range(16):
        tile, j = wo_tile(f)
        L.need(f"a{j}", f"f{f}")
        k(f"{SM} {v(DW+4*tile,4)}, {v(AW[j],4)}, {v(fbuf[f],8)}, {v(IDX)}")
        if f + 9 < 16:
            fbuf[f+9] = fbuf[f]; refill += [(f+9, 0), (f+9, 1)]
        if f == 0:
            L.need("w"); k("s_barrier")
            for j2 in (1, 2, 3):
                L(f"a{j2}", f"ds_read_b128 {v(AW[j2],4)}, {v(AW[j2])} offset:{L_O}")
            k(z[4]); k(z[5])
        else:
            for _ in range(2 if f < 6 else 1):
                if refill: wo(*refill.pop(0))
        if f == 1: k(z[6]); k(z[7])
        if f in (8, 9): k(cv(0, f - 8))
        if f in (11, 12): k(cv(1, f - 11))
        if f == 13: k(f"global_store_dwordx4 {v(vPst)}, {v(PS,4)}, {s(sPst[par],2)} {sf}")
        if f in (14, 15): k(cv(2, f - 14))
    assert not refill
    add64(k, sPUB, sPUB, 0x20000)
    k(cv(3, 0)); k(cv(3, 1))
    k(f"global_store_dwordx4 {v(vPst)}, {v(PS+4,4)}, {s(sPst[par],2)} offset:2048 {sf}")
    st(k, 4)
    def poll(b):
        k(f"global_load_dwordx4 {v(b,4)}, {v(vM)}, {s(sPld[par],2)} sc1")
        k(f"global_load_dwordx4 {v(b+4,4)}, {v(vM)}, {s(sPld[par],2)} offset:1024 sc1")
    sh = Asm(); shadow1(sh)
    n1 = CFG.h1
    for l in sh.lines[:n1]: k(l)
    k("s_barrier")
    poll(8)
    for l in sh.lines[n1:]: k(l)
    k(f"v_mov_b32 {v(PUBR+1)}, -1")
    poll(16)
    lp, lj = k.newlabel("Lpo"), k.newlabel("Lpj")
    RD = X0
    k(f"{lp}:")
    for b in (8, 16):
        k(f"""
        s_waitcnt vmcnt(2)
        {MF} {v(RD,4)}, {v(SEL,4)}, {v(b,4)}, 0
        v_max_u32 {v(RD+4)}, {v(b)}, {v(b+4)}
        v_cmp_eq_u32 vcc, -1, {v(RD+4)}
        {MF} {v(RD,4)}, {v(SEL,4)}, {v(b+4,4)}, {v(RD,4)}
        s_cbranch_vccz {lj}
        """)
        poll(b)
    k(f"""
    s_sub_u32 {s(sBUD)}, {s(sBUD)}, 1
    s_cbranch_scc0 {lp}
    s_branch {exit_label}
    {lj}:
    v_add_f32_dpp {v(RD)}, {v(RD)}, {v(RD)} row_ror:8 {DPPM}
    v_add_f32_dpp {v(RD+1)}, {v(RD+1)}, {v(RD+1)} row_ror:8 {DPPM}
    v_add_f32_dpp {v(RD)}, {v(RD)}, {v(RD)} row_ror:4 {DPPM}
    v_add_f32_dpp {v(RD+1)}, {v(RD+1)}, {v(RD+1)} row_ror:4 {DPPM}
    v_cvt_pk_bf16_f32 {v(RD+4)}, {v(RD)}, {v(RD+1)}
    global_store_dword {v(vMst)}, {v(RD+4)}, {s(sM[1-par],2)} offset:-4096 {sf}
    global_store_dword {v(vMst)}, {v(PUBR+1)}, {s(sM[par],2)} offset:-4096 {sf}
    """)
    st(k, 5)
Cfg.h1 = 6

def heads_loop(k, sf, exit_label, done_label, stamp=None):
    st = stamp if stamp else (lambda kk, i: None)
    cold = Asm()
    top, ll = k.newlabel("Lhl"), k.newlabel("Llast")
    k(f"{top}:")
    heads_step(k, 0, sf, exit_label, cold, st)
    k(f"s_cmp_eq_u32 {s(sSTEP)}, 63\n s_cbranch_scc1 {ll}")
    heads_step(k, 1, sf, exit_label, cold, st)
    k(f"s_branch {top}\n {ll}:")
    heads_last(k, exit_label, done_label, cold, st)
    k.lines += cold.lines
```

```python
from asmgen import *
from layout import *
import math, struct

MF = "v_mfma_f32_16x16x32_bf16"
MF16 = "v_mfma_f32_16x16x16_bf16"
DPPM = "row_mask:0xf bank_mask:0xf"
sWS, sDBG, sRK, sW, sBUD = 4, 6, 8, 9, 27
LOG2E = math.log2(math.e)
CEXP = (128 ** -0.5) * LOG2E
BUDGET = 400000
def f2u(x): return struct.unpack("<I", struct.pack("<f", x))[0]
def fx(x): return hex(f2u(x))

def add64(k, dst, src, off):
    k(f"s_add_u32 {s(dst)}, {s(src)}, {off}\n s_addc_u32 {s(dst+1)}, {s(src+1)}, 0")

def lane_ids(k, l=1, g=2, n=3, r=4, c=5):
    k(f"""
    v_and_b32 v{l}, 63, v0
    v_lshrrev_b32 v{g}, 4, v{l}
    v_and_b32 v{n}, 15, v{l}
    v_lshrrev_b32 v{r}, 2, v{n}
    v_and_b32 v{c}, 3, v{l}
    """)

def load_weights(k, pieces, sring, stride, tmp=6):
    vs, va, vn, vv = tmp, tmp + 1, tmp + 2, tmp + 3
    k(f"""
    v_lshrrev_b32 v{va}, 2, v1
    v_mul_u32_u24 v{va}, {stride}, v{va}
    v_add_u32 v{vs}, v{vs}, v{va}
    v_lshl_add_u32 v{vs}, v5, 4, v{vs}
    v_lshl_add_u32 v{va}, v2, 3, v4
    v_lshlrev_b32 v{va}, 6, v{va}
    v_add_u32 v{va}, {s(sring)}, v{va}
    v_lshl_add_u32 v{vn}, v5, 3, v{va}
    v_lshl_add_u32 v{vv}, v5, 4, v{va}
    """)
    N = len(pieces)
    def dma(p):
        base, off, dest, mode = pieces[p]
        for u in range(4):
            k(f"s_add_u32 m0, {s(sring)}, {(p % 8)*4096 + u*1024}")
            k(f"v_add_u32 v{va}, {off + u*16*stride}, v{vs}")
            k(f"global_load_lds_dwordx4 v{va}, {s(base,2)}")
    for p in range(min(8, N)):
        dma(p)
    for p in range(N):
        base, off, dest, mode = pieces[p]
        k(f"s_waitcnt vmcnt({min(7, N-1-p)*4})")
        for t in range(2):
            for a_ in range(2):
                for hh in range(2):
                    o = (p % 8)*4096 + (32*a_ + 4*hh)*64 + (t*32 if mode == "n" else t*8)
                    k(f"ds_read_b64_tr_b16 {r(dest(t, a_) + 2*hh, 2)}, v{vn if mode == 'n' else vv} offset:{o}")
        if p + 8 < N:
            k("s_waitcnt lgkmcnt(0)")
            dma(p + 8)
    k("s_waitcnt lgkmcnt(0)")

def wait_ln(k, exit_label, vt=10):
    lw = k.newlabel("Lln")
    k(f"""
    v_mov_b32 v{vt+1}, {DBG_LN*4}
    {lw}:
    global_load_dword v{vt}, v{vt+1}, {s(sDBG,2)} sc1
    s_sub_u32 {s(sBUD)}, {s(sBUD)}, 1
    s_cbranch_scc1 {exit_label}
    s_waitcnt vmcnt(0)
    v_cmp_gt_u32 vcc, 32, v{vt}
    s_cbranch_vccnz {lw}
    """)

def poll_flags(k, vdst, vaddr, sbase, sneed, exit_label):
    lw = k.newlabel("Lpf")
    k(f"""
    {lw}:
    global_load_dword v{vdst}, v{vaddr}, {s(sbase,2)} sc1
    s_sub_u32 {s(sBUD)}, {s(sBUD)}, 1
    s_cbranch_scc1 {exit_label}
    s_waitcnt vmcnt(0)
    v_cmp_gt_u32 vcc, {s(sneed)}, v{vdst}
    s_cbranch_vccnz {lw}
    """)

class Fill:
    def __init__(self, k): self.k = k; self.q = []
    def add(self, text):
        self.q += [l.strip() for l in text.split("\n") if l.strip()]
    def put(self, n=2):
        for _ in range(n):
            if self.q: self.k(self.q.pop(0))
    def flush(self):
        while self.q: self.k(self.q.pop(0))

def stream_role(k, kind, exit_label):
    sV = 36
    sA, sB, sC = 40, 42, 44
    sRING, sHD, sPART, sI, sXN, sO1, sO2, sP1, sP2, sFL, sM0, sT = 46, 47, 48, 49, 50, 52, 54, 56, 58, 60, 62, 64
    qkv = kind == "qkv"
    nm = 6 if qkv else 4
    WB = [256, 384, 128] if qkv else [256, 384]
    stride = 8192 if qkv else 3584
    if qkv:
        k(f"s_load_dwordx4 {s(sA,4)}, s[0:1], {KA_WQ}\n s_load_dwordx2 {s(sC,2)}, s[0:1], {KA_WV}")
    else:
        k(f"s_load_dwordx4 {s(sA,4)}, s[0:1], {KA_WG}")
    lane_ids(k)
    k(f"""
    s_lshr_b32 {s(sHD)}, {s(sV)}, 1
    s_and_b32 {s(sPART)}, {s(sV)}, 1
    s_lshl_b32 {s(sRING)}, {s(sW)}, 15
    s_lshl_b32 {s(sT)}, {s(sHD)}, 8
    s_lshl_b32 {s(sT+1)}, {s(sW)}, 6
    s_add_u32 {s(sT)}, {s(sT)}, {s(sT+1)}
    v_mov_b32 v6, {s(sT)}
    s_waitcnt lgkmcnt(0)
    """)
    pieces = []
    for c in range(8):
        for m, wb in enumerate(WB):
            mode = "n" if (qkv and m < 2) else "v"
            pieces.append((sA + 2*m, c*64*stride, (lambda t, a_, wb=wb, c=c: wb + (t*16 + 2*c + a_)*4), mode))
    load_weights(k, pieces, sRING, stride)
    vL, vRD, vFL, vFV = 104, 105, 106, 107
    ACC, XB, ST = 0, 48, 80
    k(f"""
    v_lshlrev_b32 v{vL}, 4, v1
    v_mov_b32 v{vRD}, v{vL}
    s_lshl_b32 {s(sT)}, {s(sPART)}, 15
    s_lshl_b32 {s(sT+1)}, {s(sW)}, 13
    s_add_u32 {s(sT)}, {s(sT)}, {s(sT+1)}
    s_add_u32 {s(sT)}, {s(sT)}, {WS_XN}
    s_mov_b32 {s(sM0)}, {s(sT+1)}
    s_mov_b32 {s(sI)}, 0
    """)
    add64(k, sXN, sWS, s(sT))
    if qkv:
        k(f"""
        s_lshl_b32 {s(sT)}, {s(sPART)}, 19
        s_lshl_b32 {s(sT+1)}, {s(sHD)}, 14
        s_add_u32 {s(sT)}, {s(sT)}, {s(sT+1)}
        s_lshr_b32 {s(sT+2)}, {s(sT)}, 1
        s_add_u32 {s(sT)}, {s(sT)}, {WS_KV - 0x100000}
        s_add_u32 {s(sT+2)}, {s(sT+2)}, {WS_Q - 0x80000}
        """)
        add64(k, sP1, sWS, s(sT)); add64(k, sP2, sWS, s(sT+2))
        add64(k, sO1, sP1, 0x100000); add64(k, sO2, sP2, 0x80000)
        vK, vV, vQ = 108, 109, 110
        k(f"""
        s_lshr_b32 {s(sT)}, {s(sW)}, 1
        s_lshl_b32 {s(sT)}, {s(sT)}, 12
        s_and_b32 {s(sT+1)}, {s(sW)}, 1
        s_lshl_b32 {s(sT+1)}, {s(sT+1)}, 10
        s_add_u32 {s(sT)}, {s(sT)}, {s(sT+1)}
        v_add_u32 v{vK}, {s(sT)}, v{vL}
        v_add_u32 v{vK+3}, 8192, v{vK}
        s_lshl_b32 {s(sT)}, {s(sW)}, 12
        v_add_u32 v{vV}, {s(sT)}, v{vL}
        s_lshl_b32 {s(sT)}, {s(sW)}, 10
        s_add_u32 {s(sT)}, {s(sT)}, 2048
        v_add_u32 v{vQ}, {s(sT)}, v{vL}
        s_lshl_b32 {s(sT)}, {s(sHD)}, 7
        s_lshl_b32 {s(sT+1)}, {s(sPART)}, 4
        s_add_u32 {s(sT)}, {s(sT)}, {s(sT+1)}
        s_lshl_b32 {s(sT+1)}, {s(sW)}, 2
        s_add_u32 {s(sT)}, {s(sT)}, {s(sT+1)}
        s_add_u32 {s(sT)}, {s(sT)}, {WS_FLG + F_KV}
        v_mov_b32 v{vFL}, {s(sT)}
        """)
    else:
        k(f"""
        s_lshl_b32 {s(sT)}, {s(sPART)}, 17
        s_lshl_b32 {s(sT+1)}, {s(sHD)}, 2
        s_add_u32 {s(sT+1)}, {s(sT+1)}, {s(sW)}
        s_lshl_b32 {s(sT+2)}, {s(sT+1)}, 10
        s_add_u32 {s(sT)}, {s(sT)}, {s(sT+2)}
        s_add_u32 {s(sT)}, {s(sT)}, {WS_H - 0x40000 + 0x10000}
        """)
        add64(k, sP1, sWS, s(sT))
        add64(k, sO1, sP1, 0x40000 - 0x10000)
        k(f"""
        s_lshl_b32 {s(sT)}, {s(sPART)}, 8
        s_lshl_b32 {s(sT+1)}, {s(sT+1)}, 2
        s_add_u32 {s(sT)}, {s(sT)}, {s(sT+1)}
        s_add_u32 {s(sT)}, {s(sT)}, {WS_FLG + F_H}
        v_mov_b32 v{vFL}, {s(sT)}
        """)
    for j in range(0, 48, 2):
        k(f"v_mov_b64 {v(ACC+j,2)}, 0")
    k("s_barrier")
    wait_ln(k, exit_label)
    def xdma():
        out = []
        for hlf in range(2):
            out.append(f"s_add_u32 m0, {s(sM0)}, {hlf*4096}")
            for u in range(4):
                out.append(f"global_load_lds_dwordx4 v{vL if hlf == 0 else vFV}, {s(sXN,2)} offset:{u*1024} sc1")
        return out
    k(f"v_add_u32 v{vFV}, 4096, v{vL}")
    for l in xdma(): k(l)
    k("s_waitcnt vmcnt(0)")
    def acc(t, m): return ACC + (t*nm + m)*4
    def epilogue(t, F, cur):
        if qkv:
            o1, o2 = (sO1, sO2) if cur else (sP1, sP2)
            for m, stg in ((0, ST), (2, ST + 4)):
                for e in range(2):
                    for hh in range(2):
                        F.add(f"v_cvt_pk_bf16_f32 v{stg+2*e+hh}, v{acc(t,m+e)+2*hh}, v{acc(t,m+e)+2*hh+1}")
                if m == 0: F.add(f"global_store_dwordx4 v{110}, {v(stg,4)}, {s(o2,2)} offset:{-2048 if t == 0 else 2048} sc1")
                else: F.add(f"global_store_dwordx4 v{108 if t == 0 else 111}, {v(stg,4)}, {s(o1,2)} sc1")
            for e in range(2):
                for hh in range(2):
                    F.add(f"v_cvt_pk_bf16_f32 v{ST+8+4*e+2*t+hh}, v{acc(t,4+e)+2*hh}, v{acc(t,4+e)+2*hh+1}")
                if t == 1:
                    F.add(f"global_store_dwordx4 v{109}, {v(ST+8+4*e,4)}, {s(o1,2)} offset:{2048+1024*e} sc1")
        else:
            c1 = -2 * math.sqrt(2 / math.pi) * LOG2E
            T0 = ST + 8
            for e in range(2):
                for i in range(4):
                    g_, u_, x = acc(t, e) + i, acc(t, 2 + e) + i, T0 + 4*e + i
                    F.add(f"""
                    v_mul_f32 v{x}, v{g_}, v{g_}
                    v_mul_f32 v{u_}, v{u_}, v{g_}
                    v_fmaak_f32 v{x}, v{x}, v112, {fx(c1)}
                    v_mul_f32 v{x}, v{x}, v{g_}
                    v_exp_f32 v{x}, v{x}
                    """)
            for e in range(2):
                for i in range(4):
                    x = T0 + 4*e + i
                    F.add(f"v_add_f32 v{x}, 1.0, v{x}")
            for e in range(2):
                for i in range(4):
                    x = T0 + 4*e + i
                    F.add(f"v_rcp_f32 v{x}, v{x}")
            for e in range(2):
                for i in range(4):
                    u_, x = acc(t, 2 + e) + i, T0 + 4*e + i
                    F.add(f"v_mul_f32 v{x}, v{x}, v{u_}")
            for j in range(4):
                F.add(f"v_cvt_pk_bf16_f32 v{ST+4*t+j}, v{T0+2*j}, v{T0+2*j+1}")
            F.add(f"global_store_dwordx4 v{vL}, {v(ST+4*t,4)}, {s(sO1 if cur else sP1,2)} sc1")
    if not qkv:
        k(f"v_mov_b32 v112, {fx(-2 * math.sqrt(2 / math.pi) * LOG2E * 0.044715)}")
    top = k.newlabel("Lst")
    k("v_mov_b32 v113, 0")
    k(f"{top}:")
    k("s_barrier")
    if qkv: k(f"global_store_dword v{vFL}, v113, {s(sWS,2)} sc1")
    NB = 8
    def xread(f): k(f"ds_read_b128 {v(XB + (f % NB)*4, 4)}, v{vRD} offset:{f*1024}")
    for f in range(4): xread(f)
    add64(k, sXN, sXN, 0x10000)
    k(f"s_xor_b32 {s(sM0)}, {s(sM0)}, 0x8000")
    F = Fill(k)
    st_late = 2 if qkv else 1
    for t in range(2):
        if t == 0:
            epilogue(1, F, False)
            F.q = F.q[:6] + xdma() + F.q[6:] if False else F.q
            dm = xdma()
        else:
            epilogue(0, F, True)
            dm = []
        for kk in range(16):
            f = t*16 + kk
            if f + 4 < 32: xread(f + 4)
            k(f"s_waitcnt lgkmcnt({min(4, 31 - f)})")
            xb = v(XB + (f % NB)*4, 4)
            for m in range(nm):
                w = r(WB[m // 2] + ((m % 2)*16 + kk)*4, 4)
                d = v(acc(t, m), 4)
                c = "0" if kk == 0 else d
                if qkv and m >= 4: k(f"{MF} {d}, {xb}, {w}, {c}")
                else: k(f"{MF} {d}, {w}, {xb}, {c}")
                if m == nm - 1 and dm and kk < 10:
                    k(dm.pop(0))
                elif kk >= 1 or m >= 2:
                    F.put(1 if qkv else 2)
        assert not dm
        F.flush()
    k(f"""
    v_mov_b32 v113, {s(sI)}
    s_waitcnt vmcnt({st_late})
    v_xor_b32 v{vRD}, 0x8000, v{vRD}
    """)
    if not qkv: k(f"global_store_dword v{vFL}, v113, {s(sWS,2)} sc1")
    if qkv:
        k(f"s_mov_b64 {s(sP1,2)}, {s(sO1,2)}\n s_mov_b64 {s(sP2,2)}, {s(sO2,2)}")
        add64(k, sO1, sO1, 0x100000); add64(k, sO2, sO2, 0x80000)
    else:
        add64(k, sP1, sO1, 0x10000); add64(k, sO1, sO1, 0x40000)
    k(f"""
    s_add_u32 {s(sI)}, {s(sI)}, 1
    s_cmp_lt_u32 {s(sI)}, 32
    s_cbranch_scc1 {top}
    """)
    F = Fill(k); epilogue(1, F, False); F.flush()
    k(f"""
    v_mov_b32 v113, 32
    s_waitcnt vmcnt(0)
    s_barrier
    global_store_dword v{vFL}, v113, {s(sWS,2)} sc1
    s_branch {exit_label}
    """)

def xg_reduce(k, op, a_, b_, t0, t1):
    k(f"""
    v_mov_b32 v{t0}, v{a_}
    v_mov_b32 v{t1}, v{a_}
    v_permlane16_swap_b32 v{t0}, v{t1}
    {op} v{t0}, v{t0}, v{t1}
    v_mov_b32 v{t1}, v{t0}
    v_permlane32_swap_b32 v{t0}, v{t1}
    {op} v{b_}, v{t0}, v{t1}
    """)

def bf_round(k, x):
    k(f"v_cvt_pk_bf16_f32 v{x}, v{x}, v{x}\n v_and_b32 v{x}, 0xffff0000, v{x}")

def ln_role(k):
    sX, sT, sO = 40, 44, 42
    k(f"s_load_dwordx2 {s(sX,2)}, s[0:1], {KA_X}")
    lane_ids(k)
    k(f"""
    s_lshl_b32 {s(sT)}, {s(sRK)}, 2
    s_add_u32 {s(sT)}, {s(sT)}, {s(sW)}
    s_lshl_b32 {s(sT+1)}, {s(sT)}, 14
    v_lshlrev_b32 v6, 10, v3
    v_lshl_add_u32 v6, v2, 4, v6
    v_add_u32 v6, {s(sT+1)}, v6
    s_waitcnt lgkmcnt(0)
    """)
    XR, U = 16, 128
    for kk in range(16):
        k(f"global_load_dwordx4 {v(XR+4*kk,4)}, v6, {s(sX,2)} offset:{kk*64}")
    k(f"""
    s_lshl_b32 {s(sT+2)}, {s(sT)}, 7
    s_add_u32 {s(sT+2)}, {s(sT+2)}, {WS_FLG}
    v_and_b32 v7, 31, v1
    v_lshlrev_b32 v7, 2, v7
    v_add_u32 v7, {s(sT+2)}, v7
    v_mov_b32 v8, 0
    global_store_dword v7, v8, {s(sWS,2)} sc1
    s_add_u32 {s(sT+1)}, {s(sT+1)}, {WS_XN}
    v_lshlrev_b32 v9, 4, v1
    v_add_u32 v9, 4096, v9
    v_add_u32 v10, 8192, v9
    v_mov_b64 v[12:13], 0
    v_mov_b64 v[14:15], 0
    """)
    add64(k, sO, sWS, s(sT+1))
    for kk in range(16):
        k(f"s_waitcnt vmcnt({16-kk})")
        for j in range(4):
            x = XR + 4*kk + j; u = U + 8*kk + 2*j
            k(f"v_lshlrev_b32 v{u}, 16, v{x}\n v_and_b32 v{u+1}, 0xffff0000, v{x}")
            k(f"v_pk_add_f32 {v(12+2*(j%2),2)}, {v(12+2*(j%2),2)}, {v(u,2)}")
    k("v_pk_add_f32 v[12:13], v[12:13], v[14:15]\n v_add_f32 v12, v12, v13")
    xg_reduce(k, "v_add_f32", 12, 12, 14, 15)
    k(f"v_mul_f32 v12, {fx(-1.0/512)}, v12\n v_mov_b32 v11, v12")
    bf_round(k, 11)
    k("v_mov_b64 v[14:15], 0\n v_mov_b64 v[80:81], 0")
    for p in range(64):
        u = U + 2*p; t = 84 + 2*(p % 4); a_ = (14, 80)[p % 2]
        k(f"v_pk_add_f32 {v(t,2)}, {v(u,2)}, v[12:13] op_sel_hi:[1,0]")
        k(f"v_pk_fma_f32 {v(a_,2)}, {v(t,2)}, {v(t,2)}, {v(a_,2)}")
    k("v_pk_add_f32 v[14:15], v[14:15], v[80:81]\n v_add_f32 v14, v14, v15")
    xg_reduce(k, "v_add_f32", 14, 14, 80, 81)
    k(f"v_mul_f32 v14, {fx(1.0/512)}, v14")
    bf_round(k, 14)
    k(f"v_add_f32 v14, {fx(1e-5)}, v14")
    bf_round(k, 14)
    k("v_sqrt_f32 v14, v14")
    bf_round(k, 14)
    k("v_rcp_f32 v14, v14\n v_mov_b32 v12, v11")
    for kk in range(16):
        for j in range(4):
            x = XR + 4*kk + j; u = U + 8*kk + 2*j
            k(f"""
            v_pk_add_f32 {v(u,2)}, {v(u,2)}, v[12:13] op_sel_hi:[1,0]
            v_cvt_pk_bf16_f32 v{u+1}, v{u}, v{u+1}
            v_lshlrev_b32 v{u}, 16, v{u+1}
            v_and_b32 v{u+1}, 0xffff0000, v{u+1}
            v_pk_mul_f32 {v(u,2)}, {v(u,2)}, v[14:15] op_sel_hi:[1,0]
            v_cvt_pk_bf16_f32 v{x}, v{u}, v{u+1}
            """)
        k(f"global_store_dwordx4 v{9 + kk//8}, {v(XR+4*kk,4)}, {s(sO,2)} offset:{(kk%8)*1024 - 4096} sc1")
    lsk = k.newlabel("Llns")
    k(f"""
    s_waitcnt vmcnt(0)
    s_barrier
    s_cmp_lg_u32 {s(sW)}, 0
    s_cbranch_scc1 {lsk}
    v_mov_b32 v7, {DBG_LN*4}
    v_mov_b32 v8, 1
    s_mov_b64 exec, 1
    global_atomic_add v7, v8, {s(sDBG,2)} sc1
    s_mov_b64 exec, -1
    {lsk}:
    """)

def attn_role(k, exit_label):
    sKV, sQ, sPUB, sO, sI, sN1, sN2, sT = 40, 42, 44, 46, 48, 49, 50, 52
    sMK = 60
    vL, vL2, vF1, vF2, vF3, vTw, vTr, ONES, NEGB, vO1 = 6, 7, 8, 9, 10, 11, 12, 16, 13, 14
    Q, K, V, PB_, S, FK = 32, 64, 96, 128, 144, 176
    k(f"""
    v_lshlrev_b32 v{vL}, 4, v1
    v_add_u32 v{vL}, 4096, v{vL}
    v_add_u32 v{vL2}, 8192, v{vL}
    v_add_u32 v{vO1}, {0x20000}, v{vL}
    s_lshl_b32 {s(sT)}, {s(sW)}, 19
    s_lshl_b32 {s(sT+1)}, {s(sRK)}, 14
    s_add_u32 {s(sT)}, {s(sT)}, {s(sT+1)}
    s_add_u32 {s(sT+1)}, {s(sT)}, {WS_KV}
    """)
    add64(k, sKV, sWS, s(sT+1))
    k(f"s_lshr_b32 {s(sT+1)}, {s(sT)}, 1\n s_add_u32 {s(sT+1)}, {s(sT+1)}, {WS_Q}")
    add64(k, sQ, sWS, s(sT+1))
    k(f"s_lshr_b32 {s(sT+1)}, {s(sT)}, 2\n s_add_u32 {s(sT+1)}, {s(sT+1)}, {WS_PUB}")
    add64(k, sPUB, sWS, s(sT+1))
    k(f"""
    s_lshl_b32 {s(sT)}, {s(sW)}, 18
    s_lshl_b32 {s(sT+1)}, {s(sRK)}, 12
    s_add_u32 {s(sT)}, {s(sT)}, {s(sT+1)}
    s_add_u32 {s(sT)}, {s(sT)}, {WS_O}
    """)
    add64(k, sO, sWS, s(sT))
    k(f"""
    s_lshl_b32 {s(sT)}, {s(sRK)}, 7
    s_and_b32 {s(sT+1)}, {s(sW)}, 1
    s_lshl_b32 {s(sT+1)}, {s(sT+1)}, 4
    s_add_u32 {s(sT+1)}, {s(sT+1)}, {s(sT)}
    s_add_u32 {s(sT+1)}, {s(sT+1)}, {WS_FLG + F_KV}
    v_lshlrev_b32 v{vF1}, 2, v5
    v_add_u32 v{vF2}, {s(sT)}, v{vF1}
    v_add_u32 v{vF2}, {WS_FLG + F_PUB}, v{vF2}
    v_add_u32 v{vF1}, {s(sT+1)}, v{vF1}
    s_lshl_b32 {s(sT)}, {s(sW)}, 7
    s_lshl_b32 {s(sT+1)}, {s(sRK)}, 2
    s_add_u32 {s(sT)}, {s(sT)}, {s(sT+1)}
    s_add_u32 {s(sT)}, {s(sT)}, {WS_FLG + F_O}
    v_mov_b32 v{vF3}, {s(sT)}
    s_lshl_b32 {s(sT)}, {s(sW)}, 12
    v_xor_b32 v15, v2, v4
    v_lshlrev_b32 v15, 3, v15
    v_lshl_add_u32 v15, v3, 5, v15
    v_add_u32 v{vTw}, {s(sT)}, v15
    v_xor_b32 v15, v5, v2
    v_lshlrev_b32 v15, 3, v15
    v_lshl_add_u32 v20, v2, 2, v4
    v_lshl_add_u32 v15, v20, 5, v15
    v_add_u32 v{vTr}, {s(sT)}, v15
    v_mov_b32 v{NEGB}, {fx(-1e9 / 128 ** -0.5)}
    v_lshlrev_b32 v15, 2, v2
    s_lshr_b32 {s(sN1)}, {s(sW)}, 1
    s_add_u32 {s(sN1)}, {s(sN1)}, 1
    s_add_u32 {s(sN2)}, {s(sW)}, 1
    s_mov_b32 {s(sI)}, 0
    """)
    for i in range(4):
        k(f"v_add_u32 v20, {i}, v15\n v_cmp_le_u32 {s(sMK+2*i,2)}, v20, v3")
        k(f"v_mov_b32 v{ONES+i}, 0x3f803f80")
    wait_ln(k, exit_label, 20)
    top = k.newlabel("Lat")
    k(f"{top}:")
    poll_flags(k, 20, vF1, sWS, sN1, exit_label)
    for f in range(8):
        k(f"global_load_dwordx4 {v(Q+4*f,4)}, v{vL}, {s(sQ,2)} offset:{f*1024-4096} sc1")
    for f in range(8):
        o = (f//2)*4096 + (f%2)*1024
        k(f"global_load_dwordx4 {v(K+4*f,4)}, v{vL if o < 8192 else vL2}, {s(sKV,2)} offset:{o%8192-4096} sc1")
    for f in range(8):
        o = (f//2)*4096 + (f%2)*1024 + 2048
        k(f"global_load_dwordx4 {v(V+4*f,4)}, v{vL if o < 8192 else vL2}, {s(sKV,2)} offset:{o%8192-4096} sc1")
    k("s_waitcnt vmcnt(8)")
    S00, S10, S11, SM0, SM1 = S, S+4, S+8, S+12, S+16
    for kk in range(4):
        for d, tq, tk in ((S00, 0, 0), (S10, 1, 0), (S11, 1, 1)):
            k(f"{MF} {v(d,4)}, {v(K+16*tk+4*kk,4)}, {v(Q+16*tq+4*kk,4)}, {'0' if kk == 0 else v(d,4)}")
    for d in (S00, S11):
        for i in range(4):
            k(f"v_cndmask_b32 v{d+i}, v{NEGB}, v{d+i}, {s(sMK+2*i,2)}")
    MX0, MX1, T0, T1 = 20, 21, 22, 23
    k(f"""
    v_max3_f32 v{MX0}, v{S00}, v{S00+1}, v{S00+2}
    v_max3_f32 v{MX1}, v{S10}, v{S10+1}, v{S10+2}
    v_max_f32 v{MX0}, v{MX0}, v{S00+3}
    v_max3_f32 v{MX1}, v{MX1}, v{S10+3}, v{S11}
    v_max3_f32 v{MX1}, v{MX1}, v{S11+1}, v{S11+2}
    v_max_f32 v{MX1}, v{MX1}, v{S11+3}
    """)
    poll_flags(k, 24, vF2, sWS, sN2, exit_label)
    for w in range(4):
        k(f"global_load_dwordx4 {v(PB_+4*w,4)}, v{vL}, {s(sPUB,2)} offset:{w*1024-4096} sc1")
    for w in range(4):
        k(f"s_waitcnt vmcnt({3-w})")
        k(f"ds_write_b32 v{vTw}, v{PB_+4*w} offset:{w*1024}")
        k(f"ds_write_b32 v{vTw}, v{PB_+4*w+1} offset:{w*1024+512}")
    for kk in range(4):
        for hh in range(2):
            k(f"ds_read_b64_tr_b16 {v(FK+4*kk+2*hh,2)}, v{vTr} offset:{kk*1024 + hh*512}")
    for kk in range(4):
        k(f"s_waitcnt lgkmcnt({6-2*kk})")
        for d, tq in ((SM0, 0), (SM1, 1)):
            k(f"{MF} {v(d,4)}, {v(FK+4*kk,4)}, {v(Q+16*tq+4*kk,4)}, {'0' if kk == 0 else v(d,4)}")
    k(f"v_max3_f32 v{MX0}, v{MX0}, v{SM0}, v{SM0+1}\n v_max3_f32 v{MX1}, v{MX1}, v{SM1}, v{SM1+1}")
    xg_reduce(k, "v_max_f32", MX0, MX0, T0, T1)
    xg_reduce(k, "v_max_f32", MX1, MX1, 24, 25)
    k(f"v_mul_f32 v{MX0}, {fx(-CEXP)}, v{MX0}\n v_mul_f32 v{MX1}, {fx(-CEXP)}, v{MX1}")
    els = [(SM0, MX0), (SM0+1, MX0), (SM1, MX1), (SM1+1, MX1)] + [(S00+i, MX0) for i in range(4)] + [(S10+i, MX1) for i in range(8)]
    for x, m in els:
        k(f"v_fmamk_f32 v{x}, v{x}, {fx(CEXP)}, v{m}")
    for x, m in els:
        k(f"v_exp_f32 v{x}, v{x}")
    PM0, PM1, P0, P1 = 192, 196, 200, 204
    for pm, sm in ((PM0, SM0), (PM1, SM1)):
        k(f"v_cvt_pk_bf16_f32 v{pm}, v{sm}, v{sm+1}\n v_mov_b32 v{pm+1}, 0\n v_mov_b32 v{pm+2}, 0\n v_cvt_pk_bf16_f32 v{pm+3}, v{sm}, v{sm+1}")
    k(f"v_cvt_pk_bf16_f32 v{P0}, v{S00}, v{S00+1}\n v_cvt_pk_bf16_f32 v{P0+1}, v{S00+2}, v{S00+3}\n v_mov_b32 v{P0+2}, 0\n v_mov_b32 v{P0+3}, 0")
    for j in range(4):
        k(f"v_cvt_pk_bf16_f32 v{P1+j}, v{S10+2*j}, v{S10+2*j+1}")
    OA, SU = K, 208
    def oa(tq, w, t): return Q + ((tq*4 + w)*2 + t)*4
    for tq, pm in ((0, PM0), (1, PM1)):
        k(f"{MF16} {v(SU+4*tq,4)}, {v(ONES,2)}, {v(pm,2)}, 0")
    for tq, pm in ((0, PM0), (1, PM1)):
        for w in range(4):
            for t in range(2):
                k(f"{MF16} {v(oa(tq,w,t),4)}, {v(PB_+4*w+2,2)}, {v(pm+2*t,2)}, 0")
    for tq, p in ((0, P0), (1, P1)):
        k(f"{MF} {v(SU+4*tq,4)}, {v(ONES,4)}, {v(p,4)}, {v(SU+4*tq,4)}")
    for tq, p in ((0, P0), (1, P1)):
        for w in range(4):
            for t in range(2):
                k(f"{MF} {v(oa(tq,w,t),4)}, {v(V+(2*w+t)*4,4)}, {v(p,4)}, {v(oa(tq,w,t),4)}")
        if tq == 0:
            k(f"v_rcp_f32 v20, v{SU}\n v_rcp_f32 v22, v{SU+4}")
    for tq in range(2):
        for w in range(4):
            b = oa(tq, w, 0)
            for j in range(4):
                k(f"v_pk_mul_f32 {v(b+2*j,2)}, {v(b+2*j,2)}, {v(20+2*tq,2)} op_sel_hi:[1,0]")
            for j in range(4):
                k(f"v_cvt_pk_bf16_f32 v{b+j}, v{b+2*j}, v{b+2*j+1}")
            k(f"global_store_dwordx4 v{vL if tq == 0 else vO1}, {v(b,4)}, {s(sO,2)} offset:{w*1024-4096} sc1")
    k(f"s_add_u32 {s(sI)}, {s(sI)}, 1\n v_mov_b32 v20, {s(sI)}")
    add64(k, sKV, sKV, 0x200000); add64(k, sQ, sQ, 0x100000); add64(k, sPUB, sPUB, 0x80000); add64(k, sO, sO, 0x100000)
    k(f"""
    s_add_u32 {s(sN1)}, {s(sN1)}, 2
    s_add_u32 {s(sN2)}, {s(sN2)}, 4
    s_waitcnt vmcnt(0)
    s_mov_b64 exec, 1
    global_store_dword v{vF3}, v20, {s(sWS,2)} sc1
    s_mov_b64 exec, -1
    s_cmp_lt_u32 {s(sI)}, 16
    s_cbranch_scc1 {top}
    s_branch {exit_label}
    """)

def final_role(k, exit_label):
    sG = 36
    sWO, sWD, sX, sOUT, sRING, sS, sO, sH, sN, sT = 40, 42, 44, 46, 48, 49, 50, 52, 54, 56
    WO, WD = 256, 144
    k(f"""
    s_load_dwordx2 {s(sWO,2)}, s[0:1], {KA_WO}
    s_load_dwordx2 {s(sWD,2)}, s[0:1], {KA_WD}
    s_load_dwordx2 {s(sX,2)}, s[0:1], {KA_X}
    s_load_dwordx2 {s(sOUT,2)}, s[0:1], {KA_OUT}
    """)
    lane_ids(k)
    k(f"""
    s_lshl_b32 {s(sRING)}, {s(sW)}, 15
    s_and_b32 {s(sT)}, {s(sRK)}, 15
    s_lshl_b32 {s(sT)}, {s(sT)}, 6
    v_mov_b32 v6, {s(sT)}
    s_lshl_b32 {s(sT+1)}, {s(sW)}, 20
    s_mul_i32 {s(sT+2)}, {s(sW)}, {448*1024}
    s_waitcnt lgkmcnt(0)
    """)
    add64(k, sWO, sWO, s(sT+1)); add64(k, sWD, sWD, s(sT+2))
    pieces = [(sWD, c*65536, (lambda t, a_, c=c: WD + (t*14 + 2*c + a_)*4), "v") for c in range(7)]
    pieces += [(sWO, c*65536, (lambda t, a_, c=c: WO + (t*32 + 2*c + a_)*4), "v") for c in range(16)]
    load_weights(k, pieces, sRING, 1024)
    vL = 6
    vXO, vFH, vFO, vLW, vLR = 10, 11, 12, 13, 14
    XV, GT, ACC, FB = 16, 20, 28, 36
    NB = 27
    k(f"""
    v_lshlrev_b32 v{vLR}, 4, v1
    v_add_u32 v{vL}, 4096, v{vLR}
    v_add_u32 v{vL+1}, 8192, v{vL}
    v_add_u32 v{vL+2}, 8192, v{vL+1}
    v_add_u32 v{vL+3}, 8192, v{vL+2}
    s_lshl_b32 {s(sT+1)}, {s(sW)}, 11
    v_add_u32 v{vLW}, {s(sT+1)}, v{vLR}
    s_lshr_b32 {s(sT+1)}, {s(sRK)}, 4
    s_lshl_b32 {s(sT+2)}, {s(sT+1)}, 14
    s_add_u32 {s(sT+2)}, {s(sT+2)}, {s(sT)}
    s_lshl_b32 {s(sT+3)}, {s(sG)}, 15
    s_add_u32 {s(sT+2)}, {s(sT+2)}, {s(sT+3)}
    v_lshlrev_b32 v{vXO}, 10, v3
    v_lshl_add_u32 v{vXO}, v2, 4, v{vXO}
    v_add_u32 v{vXO}, {s(sT+2)}, v{vXO}
    s_lshl_b32 {s(sT+2)}, {s(sG)}, 1
    s_add_u32 {s(sT+2)}, {s(sT+2)}, {s(sT+1)}
    s_lshl_b32 {s(sT+3)}, {s(sT+2)}, 17
    s_lshl_b32 {s(sT+4)}, {s(sW)}, 15
    s_add_u32 {s(sT+3)}, {s(sT+3)}, {s(sT+4)}
    s_add_u32 {s(sT+3)}, {s(sT+3)}, {WS_O}
    """)
    add64(k, sO, sWS, s(sT+3))
    k(f"""
    s_lshl_b32 {s(sT+3)}, {s(sT+2)}, 16
    s_mul_i32 {s(sT+4)}, {s(sW)}, {14*1024}
    s_add_u32 {s(sT+3)}, {s(sT+3)}, {s(sT+4)}
    s_add_u32 {s(sT+3)}, {s(sT+3)}, {WS_H}
    """)
    add64(k, sH, sWS, s(sT+3))
    k(f"""
    v_min_u32 v{vFH}, 13, v3
    v_lshlrev_b32 v{vFH}, 2, v{vFH}
    s_mul_i32 {s(sT+4)}, {s(sW)}, 56
    s_add_u32 {s(sT+4)}, {s(sT+4)}, {WS_FLG + F_H}
    v_add_u32 v{vFH}, {s(sT+4)}, v{vFH}
    v_and_b32 v{vFO}, 7, v1
    v_lshlrev_b32 v{vFO}, 2, v{vFO}
    s_lshl_b32 {s(sT+4)}, {s(sW)}, 5
    s_add_u32 {s(sT+4)}, {s(sT+4)}, {WS_FLG + F_O}
    v_add_u32 v{vFO}, {s(sT+4)}, v{vFO}
    s_mov_b32 {s(sS)}, {s(sG)}
    s_barrier
    """)
    wait_ln(k, exit_label, 1)
    top = k.newlabel("Lfi")
    k(f"{top}:")
    def gemm(n, base, W):
        def ld(f): k(f"global_load_dwordx4 {v(FB+(f%NB)*4,4)}, v{vL+f//8}, {s(base,2)} offset:{(f%8)*1024-4096} sc1")
        for f in range(min(n, NB)): ld(f)
        for f in range(n):
            k(f"s_waitcnt vmcnt({min(n, f + NB) - 1 - f})")
            for t in range(2):
                k(f"{MF} {v(ACC+4*t,4)}, {r(W+(t*n+f)*4,4)}, {v(FB+(f%NB)*4,4)}, {'0' if f == 0 else v(ACC+4*t,4)}")
            if f + NB < n: ld(f + NB)
    def reduce(off, lab):
        k(f"""
        ds_write_b128 v{vLW}, {v(ACC,4)} offset:{off}
        ds_write_b128 v{vLW}, {v(ACC+4,4)} offset:{off+1024}
        s_waitcnt lgkmcnt(0)
        s_barrier
        s_cmp_lg_u32 {s(sW)}, 0
        s_cbranch_scc1 {lab}
        """)
        for w in range(1, 4):
            for t in range(2):
                k(f"ds_read_b128 {v(FB+(w-1)*8+4*t,4)}, v{vLR} offset:{off + w*2048 + t*1024}")
        for w in range(1, 4):
            k(f"s_waitcnt lgkmcnt({6-2*w})")
            for j in range(4):
                k(f"v_pk_add_f32 {v(ACC+2*j,2)}, {v(ACC+2*j,2)}, {v(FB+(w-1)*8+2*j,2)}")
    def rnd8(b):
        for j in range(4):
            k(f"v_cvt_pk_bf16_f32 v{b+2*j+1}, v{b+2*j}, v{b+2*j+1}")
            k(f"v_lshlrev_b32 v{b+2*j}, 16, v{b+2*j+1}\n v_and_b32 v{b+2*j+1}, 0xffff0000, v{b+2*j+1}")
    k(f"""
    s_and_b32 {s(sT)}, {s(sS)}, 1
    s_lshl_b32 {s(sT)}, {s(sT)}, 8
    v_add_u32 v2, {s(sT)}, v{vFH}
    s_lshr_b32 {s(sN)}, {s(sS)}, 1
    s_add_u32 {s(sN)}, {s(sN)}, 1
    global_load_dwordx4 {v(XV,4)}, v{vXO}, {s(sX,2)}
    """)
    poll_flags(k, 1, 2, sWS, sN, exit_label)
    gemm(14, sH, WD)
    l1, l2 = k.newlabel("Lf1"), k.newlabel("Lf2")
    reduce(0, l1)
    rnd8(ACC)
    for j in range(8): k(f"v_mul_f32 v{GT+j}, {fx(-LOG2E)}, v{ACC+j}")
    for j in range(8): k(f"v_exp_f32 v{GT+j}, v{GT+j}")
    for j in range(8): k(f"v_add_f32 v{GT+j}, 1.0, v{GT+j}")
    for j in range(8): k(f"v_rcp_f32 v{GT+j}, v{GT+j}")
    for j in range(8): k(f"v_mul_f32 v{GT+j}, v{GT+j}, v{ACC+j}")
    rnd8(GT)
    k(f"""
    {l1}:
    s_and_b32 {s(sT)}, {s(sS)}, 3
    s_lshl_b32 {s(sT)}, {s(sT)}, 7
    v_add_u32 v2, {s(sT)}, v{vFO}
    s_lshr_b32 {s(sN)}, {s(sS)}, 2
    s_add_u32 {s(sN)}, {s(sN)}, 1
    """)
    poll_flags(k, 1, 2, sWS, sN, exit_label)
    gemm(32, sO, WO)
    reduce(8192, l2)
    rnd8(ACC)
    for j in range(4): k(f"v_pk_mul_f32 {v(ACC+2*j,2)}, {v(ACC+2*j,2)}, {v(GT+2*j,2)}")
    rnd8(ACC)
    for j in range(4):
        k(f"v_lshlrev_b32 v{GT+2*j}, 16, v{XV+j}\n v_and_b32 v{GT+2*j+1}, 0xffff0000, v{XV+j}")
        k(f"v_pk_add_f32 {v(ACC+2*j,2)}, {v(ACC+2*j,2)}, {v(GT+2*j,2)}")
        k(f"v_cvt_pk_bf16_f32 v{FB+j}, v{ACC+2*j}, v{ACC+2*j+1}")
    k(f"global_store_dwordx4 v{vXO}, {v(FB,4)}, {s(sOUT,2)}")
    k(f"{l2}:")
    k(f"v_add_u32 v{vXO}, {3*32768}, v{vXO}")
    add64(k, sO, sO, 3*0x40000); add64(k, sH, sH, 3*0x20000)
    k(f"""
    s_add_u32 {s(sS)}, {s(sS)}, 3
    s_cmp_lt_u32 {s(sS)}, 64
    s_cbranch_scc1 {top}
    s_branch {exit_label}
    """)
```

```python
import sys
from asmgen import *
from layout import *
import heads2 as H
import roles as R
NAME = "recurrent_scan__memory_aug_recurrent_mem_tr__glu_gated_geglu__prompt_kernel"
HDR = open("recurrent_scan__memory_aug_recurrent_mem_tr__glu_gated_geglu__prompt.s.ref").read().split("; @launch")[0]

def gen(stamps=False, force_slow=False):
    k = Asm()
    if stamps: k("s_memrealtime s[76:77]\n s_memtime s[78:79]")
    k(f"""
    s_cmp_gt_u32 s2, 255
    s_cbranch_scc1 L_end
    s_load_dwordx2 s[4:5], s[0:1], {KA_WS}
    s_load_dwordx2 s[6:7], s[0:1], {KA_DBG}
    s_getreg_b32 s35, hwreg(HW_REG_XCC_ID)
    s_and_b32 s35, s35, 7
    v_lshrrev_b32 v2, 6, v0
    v_readfirstlane_b32 s9, v2
    s_lshr_b32 s8, s2, 3
    s_and_b32 s3, s2, 7
    s_mov_b32 s27, {R.BUDGET}
    s_waitcnt lgkmcnt(0)
    s_cmp_eq_u32 s3, 0
    s_cbranch_scc1 L_heads
    s_cmp_lt_u32 s3, 3
    s_cbranch_scc1 L_qkv
    s_cmp_eq_u32 s3, 3
    s_cbranch_scc1 L_attn
    s_cmp_eq_u32 s3, 4
    s_cbranch_scc1 L_ffn
    s_sub_u32 s36, s3, 5
    """)
    R.final_role(k, "L_fin")
    k(f"""
    L_qkv:
    s_sub_u32 s36, s3, 1
    s_lshl_b32 s36, s36, 5
    s_add_u32 s36, s36, s8
    """)
    R.stream_role(k, "qkv", "L_fin")
    k(f"""
    L_ffn:
    s_mov_b32 s36, s8
    s_cmp_gt_u32 s8, 27
    s_cbranch_scc1 L_fin
    """)
    R.stream_role(k, "ffn", "L_fin")
    k("L_attn:")
    R.ln_role(k)
    if stamps: k("s_memtime s[80:81]")
    R.attn_role(k, "L_fin")
    k("L_heads:")
    H.heads_prologue(k, "L_fin")
    stamp = None
    if stamps:
        k("s_memtime s[80:81]")
    if stamps == 2:
        for i in range(6): k(f"s_mov_b32 s{86+i}, 0")
        k("s_waitcnt lgkmcnt(0)\n s_mov_b32 s72, s80")
        def stamp(kk, i):
            kk(f"s_memtime s[{60+2*i}:{61+2*i}]")
            if i == 5:
                kk("s_waitcnt lgkmcnt(0)")
                for j in range(6):
                    kk(f"s_sub_u32 s73, s{60+2*j}, s{72 if j == 0 else 58+2*j}\n s_add_u32 s{86+j}, s{86+j}, s73")
                kk("s_mov_b32 s72, s70")
    if force_slow:
        k("s_branch L_slow")
    k(f"s_cmp_eq_u32 {s(H.sT)}, 0\n s_cbranch_scc1 L_slow")
    H.heads_loop(k, "", "L_fin", "L_fin", stamp)
    k("L_slow:")
    H.heads_loop(k, "sc1", "L_fin", "L_fin", stamp)
    k("L_fin:")
    if stamps:
        k(f"""
        s_mov_b64 exec, -1
        s_waitcnt vmcnt(0)
        s_memtime s[82:83]
        s_memrealtime s[84:85]
        s_waitcnt lgkmcnt(0)
        s_sub_u32 s82, s82, s78
        s_sub_u32 s80, s80, s78
        v_mov_b32 v4, s76
        v_mov_b32 v5, s84
        v_mov_b32 v6, s80
        v_mov_b32 v7, s82
        v_mov_b32 v8, s27
        v_mov_b32 v9, s35
        v_mov_b32 v10, 0
        v_mov_b32 v11, 0
        s_lshl_b32 s40, s2, 2
        s_add_u32 s40, s40, s9
        s_lshl_b32 s40, s40, 6
        v_mov_b32 v12, s86
        v_mov_b32 v13, s87
        v_mov_b32 v14, s88
        v_mov_b32 v15, s89
        v_mov_b32 v16, s90
        v_mov_b32 v17, s91
        s_add_u32 s40, s40, {WS_STAMP}
        v_mov_b32 v2, s40
        global_store_dwordx4 v2, v[4:7], s[4:5]
        global_store_dwordx4 v2, v[8:11], s[4:5] offset:16
        global_store_dwordx4 v2, v[12:15], s[4:5] offset:32
        global_store_dwordx4 v2, v[16:19], s[4:5] offset:48
        """)
    k("L_end:\n s_endpgm")
    return HDR + "; @launch grid=(256,1,1) block=(256,1,1) lds=163840\n" + kernel_text(NAME, k.finish())

if __name__ == "__main__":
    open("full.s", "w").write(gen())
    open("full_st.s", "w").write(gen(stamps=1))
    open("full_st2.s", "w").write(gen(stamps=2))
```
